```python
import torch

def _softmax(x, axis=-1):
    return torch.softmax(x, dim=axis)
def _gelu(x):
    return torch.nn.functional.gelu(x, approximate="tanh")
def _silu(x):
    return torch.nn.functional.silu(x)
def _sigmoid(x):
    return torch.sigmoid(x)
def _layernorm(x, axis=-1, eps=1e-5):
    m = x.mean(dim=axis, keepdim=True)
    v = x.var(dim=axis, keepdim=True, unbiased=False)
    return (x - m) / torch.sqrt(v + eps)
def _scatter_add(tgt, idx, src, axis=0):
    return tgt.clone().index_add_(axis, idx, src)
def _segment_sum(src, seg, n):
    out = torch.zeros((n,) + src.shape[1:], dtype=src.dtype)
    return out.index_add_(0, seg, src)
def _pad(x, pw):
    flat = tuple(v for pair in reversed(pw) for v in pair)
    return torch.nn.functional.pad(x, flat)

kernel_name = 'sequential_preLN__linear_attn_block__mixer_s_mlp__prompt'

def setup_inputs():

    _w = (lambda a: (lambda t: t.to(torch.bfloat16) if t.is_floating_point() else t)(torch.as_tensor(a)))
    def _A_setup():
        B, S, D = 1, 2048, 640
        return {
            "x": _w((lambda *s: torch.randn(*s, dtype=torch.bfloat16) * 0.05)(B, S, D)),
            "wqkv": _w((lambda *s: torch.randn(*s, dtype=torch.bfloat16) * 0.05)(D, 3 * D)),
            "wo": _w((lambda *s: torch.randn(*s, dtype=torch.bfloat16) * 0.05)(D, D)),
        }
    _A_in = _A_setup()

    def _B_setup():
        B, S, D, F = 1, 2048, 640, 1728
        return {
            "x":  _w((lambda *s: torch.randn(*s, dtype=torch.bfloat16) * 0.05)(B, S, D)),
            "w1": _w((lambda *s: torch.randn(*s, dtype=torch.bfloat16) * 3.2)(D, D) * (D ** -0.5)),
            "w2": _w((lambda *s: torch.randn(*s, dtype=torch.bfloat16) * 3.2)(D, D) * (D ** -0.5)),
            "w3": _w((lambda *s: torch.randn(*s, dtype=torch.bfloat16) * 3.2)(D, F) * (D ** -0.5)),
            "w4": _w((lambda *s: torch.randn(*s, dtype=torch.bfloat16) * 3.2)(F, D) * (F ** -0.5)),
        }
    _B_in = _B_setup()

    return {
        "A_x": _A_in["x"],
        "A_wqkv": _A_in["wqkv"],
        "A_wo": _A_in["wo"],
        "B_x": _B_in["x"],
        "B_w1": _B_in["w1"],
        "B_w2": _B_in["w2"],
        "B_w3": _B_in["w3"],
        "B_w4": _B_in["w4"],
    }

def reference(A_x, A_wqkv, A_wo, B_x, B_w1, B_w2, B_w3, B_w4):
    def _A_ref(x, wqkv, wo):
        B, S, D = x.shape
        H = 32; Dh = D // H
        qkv = (lambda x, *d: x.permute(*d))((x @ wqkv).reshape(B, S, 3, H, Dh), 2, 0, 3, 1, 4)
        q, k, v = qkv[0], qkv[1], qkv[2]
        phi = lambda t: torch.where(t > 0, t + 1, torch.exp(t)) + 1e-6
        pq, pk = phi(q), phi(k)
        kv = torch.einsum("bhsd,bhse->bhde", pk, v)
        z = torch.einsum("bhsd->bhd", pk)
        num = torch.einsum("bhqd,bhde->bhqe", pq, kv)
        den = torch.einsum("bhqd,bhd->bhq", pq, z)[..., None] + 1e-6
        o = num / den
        return (lambda x, *d: x.permute(*d))(o, 0, 2, 1, 3).reshape(B, S, D) @ wo

    def _B_ref(x, w1, w2, w3, w4):
        B, S, D = x.shape
        h = _gelu(_layernorm(x, axis=-1) @ w1)
        c = D // 4
        g0 = _pad(h[:, :, 0*c:1*c], ((0, 0), (1, 0), (0, 0)))[:, :S, :]
        g1 = _pad(h[:, :, 1*c:2*c], ((0, 0), (0, 1), (0, 0)))[:, 1:, :]
        g2 = _pad(h[:, :, 2*c:3*c], ((0, 0), (2, 0), (0, 0)))[:, :S, :]
        g3 = _pad(h[:, :, 3*c:   ], ((0, 0), (0, 2), (0, 0)))[:, 2:, :]
        hs = torch.concatenate([g0, g1, g2, g3], axis=-1) @ w2
        x1 = x + hs
        h2 = _gelu(_layernorm(x1, axis=-1) @ w3) @ w4
        return x1 + h2

    x = A_x
    h = x + _A_ref(_layernorm(x, axis=-1), A_wqkv, A_wo)
    h2 = h + _B_ref(_layernorm(h, axis=-1), B_w1, B_w2, B_w3, B_w4)
    return h2
```

```python
import re

TRANS = ('v_exp_f32', 'v_log_f32', 'v_rcp_f32', 'v_rsq_f32', 'v_sqrt_f32', 'v_sin_f32', 'v_cos_f32')
RMW = ('v_fmac_f32', 'v_dot2c_f32_bf16', 'v_pk_fmac_f16')


def regs(op):
    if op is None:
        return set()
    if not isinstance(op, str):
        return set()
    o = op.strip()
    if o.startswith('-'):
        o = o[1:]
    if o.startswith('abs(') and o.endswith(')'):
        o = o[4:-1]
    if o.startswith('|') and o.endswith('|'):
        o = o[1:-1]
    m = re.fullmatch(r'([vsa])(\d+)', o)
    if m:
        return {(m.group(1), int(m.group(2)))}
    m = re.fullmatch(r'([vsa])\[(\d+):(\d+)\]', o)
    if m:
        return {(m.group(1), i) for i in range(int(m.group(2)), int(m.group(3)) + 1)}
    if o in ('vcc', 'vcc_lo', 'vcc_hi'):
        return {'vcc'}
    if o in ('exec', 'exec_lo', 'exec_hi'):
        return {'exec'}
    if o == 'm0':
        return {'m0'}
    return set()


def vr(base, n=1):
    return f'v{base}' if n == 1 else f'v[{base}:{base + n - 1}]'


def sr(base, n=1):
    return f's{base}' if n == 1 else f's[{base}:{base + n - 1}]'


class Ins:
    __slots__ = ('text', 'kind', 'rd', 'wr', 'passes', 'cond', 'tok', 'srcc', 'srcab', 'wide', 'waittok', 'op')

    def __init__(self, text, kind, rd=(), wr=(), passes=0, cond=0, op=''):
        self.text = text
        self.kind = kind
        self.rd = set(rd)
        self.wr = set(wr)
        self.passes = passes
        self.cond = cond
        self.tok = None
        self.srcc = set()
        self.srcab = set()
        self.wide = False
        self.waittok = None
        self.op = op


class Asm:
    def __init__(self):
        self.ins = []
        self.cond = 0
        self._condn = 0
        self._lab = 0

    def label(self, name=None):
        if name is None:
            self._lab += 1
            name = f'L_{self._lab}'
        return name

    def place(self, name):
        self.ins.append(Ins(f'{name}:', 'label', cond=self.cond))

    def begin_cond(self):
        self._condn += 1
        self.cond = self._condn

    def end_cond(self):
        self.cond = 0

    def comment(self, t):
        self.ins.append(Ins(f'; {t}', 'comment', cond=self.cond))

    def add(self, ins):
        ins.cond = self.cond
        self.ins.append(ins)
        return ins

    def v(self, op, dst, *src, mods=''):
        rd = set()
        for s in src:
            rd |= regs(s)
        wr = regs(dst)
        if op in RMW:
            rd |= wr
        if op.startswith('v_permlane'):
            rd |= wr
            wr = wr | regs(src[0])
        kind = 'trans' if op in TRANS else 'valu'
        if op.startswith('v_dot2'):
            kind = 'dot'
        txt = f'{op} {dst}' + ''.join(f', {s}' for s in src) + (' ' + mods if mods else '')
        i = Ins(txt, kind, rd, wr, op=op)
        return self.add(i)

    def v2(self, op, dst, dst2, *src):
        rd = set()
        for s in src:
            rd |= regs(s)
        wr = regs(dst) | regs(dst2)
        txt = f'{op} {dst}, {dst2}' + ''.join(f', {s}' for s in src)
        return self.add(Ins(txt, 'valu', rd, wr, op=op))

    def s(self, op, dst, *src):
        rd = set()
        for x in src:
            rd |= regs(x)
        wr = regs(dst)
        if op.startswith('s_cmp'):
            rd |= wr
            wr = set()
        if 'saveexec' in op:
            wr |= {'exec'}
            rd |= {'exec'}
        txt = f'{op} {dst}' + ''.join(f', {x}' for x in src)
        return self.add(Ins(txt, 'salu', rd, wr, op=op))

    def mfma(self, d, A, B, C, shape='16x16x32'):
        op = f'v_mfma_f32_{shape}_bf16'
        passes = 8 if shape.startswith('32x32') else 4
        i = Ins(f'{op} {d}, {A}, {B}, {C}', 'mfma', regs(A) | regs(B) | regs(C), regs(d), passes=passes, op=op)
        i.srcc = regs(C)
        i.srcab = regs(A) | regs(B)
        return self.add(i)

    def dsr(self, op, dst, addr, off=0):
        assert 0 <= off < 65536, off
        t = f'{op} {dst}, {addr}' + (f' offset:{off}' if off else '')
        return self.add(Ins(t, 'ds', regs(addr), regs(dst), op=op))

    def dsw(self, op, addr, data, off=0):
        assert 0 <= off < 65536, off
        t = f'{op} {addr}, {data}' + (f' offset:{off}' if off else '')
        return self.add(Ins(t, 'ds', regs(addr) | regs(data), (), op=op))

    def bperm(self, dst, addr, src):
        return self.add(Ins(f'ds_bpermute_b32 {dst}, {addr}, {src}', 'ds', regs(addr) | regs(src), regs(dst), op='ds_bpermute_b32'))

    def bl(self, op, dst, voff, srd, soff='0', off=0, flags=''):
        assert 0 <= off < 4096, off
        t = f'{op} {dst}, {voff}, {srd}, {soff} offen' + (f' offset:{off}' if off else '') + (' ' + flags if flags else '')
        return self.add(Ins(t, 'vmem', regs(voff) | regs(srd) | regs(soff), regs(dst), op=op))

    def bs(self, op, data, voff, srd, soff='0', off=0, flags=''):
        assert 0 <= off < 4096, off
        t = f'{op} {data}, {voff}, {srd}, {soff} offen' + (f' offset:{off}' if off else '') + (' ' + flags if flags else '')
        i = Ins(t, 'vmem', regs(voff) | regs(srd) | regs(soff) | regs(data), (), op=op)
        if op.endswith('x4') or op.endswith('x3'):
            i.wide = regs(data)
        return self.add(i)

    def dma(self, voff, srd, soff='0', flags=''):
        t = f'buffer_load_dwordx4 {voff}, {srd}, {soff} offen' + (' ' + flags if flags else '') + ' lds'
        return self.add(Ins(t, 'vmem', regs(voff) | regs(srd) | regs(soff) | {'m0'}, (), op='dma'))

    def smem(self, op, dst, base, off):
        return self.add(Ins(f'{op} {dst}, {base}, {off}', 'smem', regs(base), regs(dst), op=op))

    def raw(self, text, kind='other', rd=(), wr=()):
        r = set()
        w = set()
        for x in rd:
            r |= regs(x)
        for x in wr:
            w |= regs(x)
        return self.add(Ins(text, kind, r, w))

    def nop(self, n):
        while n > 0:
            k = min(n, 16)
            self.add(Ins(f's_nop {k - 1}', 'nop'))
            n -= k

    def barrier(self):
        return self.add(Ins('s_barrier', 'barrier'))

    def branch(self, op, lab):
        return self.add(Ins(f'{op} {lab}', 'branch'))

    def wait_vm(self, ins):
        i = Ins('', 'waitvm')
        i.waittok = ins
        return self.add(i)

    def wait_vm0(self):
        return self.add(Ins('s_waitcnt vmcnt(0)', 'wait0vm'))

    def wait_lgkm0(self):
        return self.add(Ins('s_waitcnt lgkmcnt(0)', 'wait0lgkm'))

    def finalize(self):
        out = []
        vm = []
        lg = []
        smem_out = []

        def states(i):
            if i.kind in ('label', 'comment'):
                return 0
            if i.kind == 'nop':
                return int(i.text.split()[1]) + 1
            return 1

        def younger(lst, idx, cons):
            n = 0
            for y in lst[idx + 1:]:
                if y.cond == 0 or y.cond == cons.cond:
                    n += 1
            return n

        for cur in self.ins:
            if cur.kind in ('label', 'comment'):
                out.append(cur)
                continue
            need_vm = None
            need_lg = None
            touched = cur.rd | cur.wr
            if cur.kind == 'waitvm':
                if cur.waittok in vm:
                    idx = vm.index(cur.waittok)
                    need_vm = younger(vm, idx, cur)
                    cut_vm = idx
                else:
                    continue
            elif cur.kind == 'wait0vm':
                if cur.cond == 0:
                    vm = []
                else:
                    vm = [x for x in vm if x.cond != cur.cond]
                out.append(cur)
                continue
            elif cur.kind == 'wait0lgkm':
                if cur.cond == 0:
                    lg = []
                    smem_out = []
                else:
                    lg = [x for x in lg if x.cond != cur.cond]
                    smem_out = [x for x in smem_out if x.cond != cur.cond]
                out.append(cur)
                continue
            else:
                cut_vm = -1
                for idx, o in enumerate(vm):
                    if o.wr & touched:
                        cut_vm = idx
                if cut_vm >= 0:
                    need_vm = younger(vm, cut_vm, cur)
                cut_lg = -1
                for idx, o in enumerate(lg):
                    if o.wr & touched:
                        cut_lg = idx
                if any(o.wr & touched for o in smem_out):
                    need_lg = 0
                    cut_lg = len(lg) - 1
                    smem_out = []
                elif cut_lg >= 0:
                    need_lg = 0 if smem_out else younger(lg, cut_lg, cur)
                    if smem_out:
                        smem_out = []
                        cut_lg = len(lg) - 1
                if need_lg is not None:
                    if cur.cond == 0:
                        lg = lg[cut_lg + 1:]
                    else:
                        lg = [x for k, x in enumerate(lg) if k > cut_lg or x.cond != cur.cond]
            if need_vm is not None:
                if cur.cond == 0:
                    vm = vm[cut_vm + 1:]
                else:
                    vm = [x for k, x in enumerate(vm) if k > cut_vm or x.cond != cur.cond]
            if need_vm is not None or need_lg is not None:
                t = 's_waitcnt'
                if need_vm is not None:
                    t += f' vmcnt({min(need_vm, 63)})'
                if need_lg is not None:
                    t += f' lgkmcnt({min(need_lg, 15)})'
                w = Ins(t, 'wait', cond=cur.cond)
                out.append(w)
            if cur.kind == 'waitvm':
                continue
            req = 0
            dist = 0
            for p in reversed(out[-64:]):
                if p.kind in ('label', 'comment'):
                    continue
                need = self._hazard(p, cur)
                if need > dist:
                    req = max(req, need - dist)
                if p.cond == 0 or p.cond == cur.cond:
                    dist += states(p)
                if dist > 24:
                    break
            while req > 0:
                k = min(req, 16)
                out.append(Ins(f's_nop {k - 1}', 'nop', cond=cur.cond))
                req -= k
            out.append(cur)
            if cur.kind == 'vmem':
                vm.append(cur)
            elif cur.kind == 'ds':
                lg.append(cur)
            elif cur.kind == 'smem':
                smem_out.append(cur)
        return out

    @staticmethod
    def _hazard(p, c):
        n = 0
        pv = p.kind in ('valu', 'trans', 'dot')
        cv = c.kind in ('valu', 'trans', 'dot')
        if pv:
            vw = {r for r in p.wr if isinstance(r, tuple) and r[0] in 'va'}
            sw = {r for r in p.wr if r == 'vcc' or (isinstance(r, tuple) and r[0] == 's')}
            if c.kind == 'mfma' and vw & c.rd:
                n = max(n, 2)
            if p.kind == 'trans' and cv and c.kind != 'trans' and vw & c.rd:
                n = max(n, 1)
            if p.kind == 'trans' and c.kind == 'trans' and vw & c.rd:
                n = max(n, 1)
            if p.kind == 'dot' and (vw & (c.rd | c.wr)):
                if c.kind == 'dot' and c.op == p.op:
                    n = max(n, 0 if (vw & c.wr) else 3)
                else:
                    n = max(n, 3)
            if sw:
                if cv and sw & c.rd:
                    n = max(n, 4 if c.op in ('v_readlane_b32', 'v_writelane_b32') else 2)
                if c.kind == 'vmem' and sw & c.rd:
                    n = max(n, 5)
                if c.kind in ('salu', 'branch') and (sw & c.rd or c.kind == 'branch'):
                    n = max(n, 4)
            if cv and vw & c.rd:
                if c.op in ('v_readfirstlane_b32', 'v_readlane_b32'):
                    n = max(n, 1)
                if c.op.startswith('v_permlane') or 'dpp' in c.text or 'row_' in c.text or 'quad_perm' in c.text:
                    n = max(n, 2)
        if p.kind == 'mfma':
            d = p.wr
            tab_raw = {4: 8, 8: 12}[p.passes]
            if c.kind == 'mfma':
                if d & c.srcab:
                    n = max(n, tab_raw)
                if d & c.srcc:
                    if not (d == c.srcc and c.passes == p.passes):
                        n = max(n, {4: 6, 8: 10}[p.passes])
                if (d & c.wr) and not (d & c.srcc):
                    n = max(n, tab_raw)
            elif c.kind in ('valu', 'trans', 'dot', 'vmem', 'ds'):
                if d & (c.rd | c.wr):
                    n = max(n, tab_raw)
                if cv and p.srcc & c.wr:
                    n = max(n, {4: 3, 8: 7}[p.passes])
        if p.kind == 'salu' and 'm0' in p.wr and 'm0' in c.rd:
            n = max(n, 1)
        if p.kind == 'vmem' and p.wide and (p.wide & c.wr):
            n = max(n, 2)
        return n

    def text(self):
        lines = []
        for i in self.finalize():
            if i.kind in ('label',):
                lines.append(i.text)
            else:
                lines.append('  ' + i.text)
        return '\n'.join(lines) + '\n'
```

```python
import sys, struct, math
from asmlib import Asm, vr, sr

NAME = 'sequential_preLN__linear_attn_block__mixer_s_mlp__prompt'

S, D, F = 2048, 640, 1728
ACT = S * D * 2
O_OFF, H_OFF, HH_OFF, X1_OFF = 0, ACT, 2 * ACT, 3 * ACT
G_OFF = 4 * ACT
G_BYTES = S * F * 2
KVP_OFF = 0x1100000
KVP_BLK = 3456
ST_OFF = 0x1200000
FLG_OFF = 0x1210000
FLG_BYTES = 8 * 4096
LDS_BYTES = 163840


def f32(x):
    return '0x%08x' % struct.unpack('<I', struct.pack('<f', x))[0]


sXCD, sI, sW, sRG, sKH = 's4', 's5', 's6', 's7', 's28'
SRD_A, SRD_B, SRD_O, SRD_R, SRD_F = 8, 12, 16, 20, 24
P_X, P_WQKV, P_WO, P_W1, P_W2, P_W3, P_W4, P_OUT, P_DBG, P_WS = 32, 34, 36, 40, 42, 44, 46, 48, 50, 52
sNON = 54
SRD_E, SRD_E2 = 80, 84
vTID, vL, vN, vG = 'v0', 'v1', 'v2', 'v3'


class Gen:
    def __init__(self, persistent):
        self.persistent = persistent
        self.a = None

    def srd(self, d, ptr, off, nbytes):
        a = self.a
        if off:
            a.s('s_add_u32', sr(d), sr(ptr), off)
            a.s('s_addc_u32', sr(d + 1), sr(ptr + 1), 0)
        else:
            a.s('s_mov_b32', sr(d), sr(ptr))
            a.s('s_mov_b32', sr(d + 1), sr(ptr + 1))
        a.s('s_mov_b32', sr(d + 2), nbytes)
        a.s('s_mov_b32', sr(d + 3), '0x00020000')

    def prologue(self, endlab):
        a = self.a
        a.s('s_cmp_ge_u32', 's2', 256)
        a.branch('s_cbranch_scc1', endlab)
        a.smem('s_load_dwordx4', 's[32:35]', 's[0:1]', 0)
        a.smem('s_load_dwordx2', 's[36:37]', 's[0:1]', 16)
        a.smem('s_load_dwordx8', 's[40:47]', 's[0:1]', 32)
        a.smem('s_load_dwordx4', 's[48:51]', 's[0:1]', 64)
        a.smem('s_load_dwordx2', 's[52:53]', 's[0:1]', 80)
        a.v('v_and_b32', vL, 63, vTID)
        a.v('v_lshrrev_b32', 'v4', 6, vTID)
        a.v('v_and_b32', vN, 15, vTID)
        a.v('v_bfe_u32', vG, vTID, 4, 2)
        a.v('v_readfirstlane_b32', sW, 'v4')
        a.s('s_and_b32', sXCD, 's2', 7)
        a.s('s_lshr_b32', sI, 's2', 3)
        a.s('s_and_b32', sRG, sW, 3)
        a.s('s_lshr_b32', sKH, sW, 2)
        a.wait_lgkm0()
        self.srd(SRD_F, P_WS, FLG_OFF, FLG_BYTES)

    def bf16r(self, dst, src, tmp=None):
        a = self.a
        a.v('v_cvt_pk_bf16_f32', dst, src, src)
        a.v('v_lshlrev_b32', dst, 16, dst)

    def bf16r2(self, d0, d1, s0, s1, tmp):
        a = self.a
        a.v('v_cvt_pk_bf16_f32', tmp, s0, s1)
        a.v('v_lshlrev_b32', d0, 16, tmp)
        a.v('v_and_b32', d1, '0xffff0000', tmp)

    def dma_patterns(self, vbase, cpr, ldb, colmap, tmp):
        a = self.a
        U = cpr // 2
        M = (65536 + cpr - 1) // cpr
        for q in range(512 * U):
            assert (q * M) >> 16 == q // cpr
        t0, t1, t2 = vr(tmp), vr(tmp + 1), vr(tmp + 2)
        a.s('s_mov_b32', 's56', ldb)
        for u in range(U):
            d = vr(vbase + u)
            a.v('v_add_u32', t0, 512 * u, vTID)
            a.v('v_mul_u32_u24', t1, M, t0)
            a.v('v_lshrrev_b32', t1, 16, t1)
            a.v('v_mul_u32_u24', t2, cpr, t1)
            a.v('v_sub_u32', t0, t0, t2)
            a.v('v_bfe_u32', t2, t1, 3, 1)
            a.v('v_lshlrev_b32', t2, 2, t2)
            a.v('v_xor_b32', t1, t1, t2)
            a.v('v_mul_lo_u32', d, t1, 's56')
            a.v('v_lshl_add_u32', d, t0, 4, d)
            a.v('v_add_u32', d, colmap[1], d)
            if colmap[0] == 'kv':
                a.v('v_cmp_lt_u32', 'vcc', 4, t0)
                a.v('v_add_u32', t1, 1280 - 80, d)
                a.v('v_cndmask_b32', d, d, t1, 'vcc')
            elif colmap[0] == 'q':
                a.v('v_cmp_lt_u32', 'vcc', 4, t0)
                a.v('v_bfrev_b32', t1, 1)
                a.v('v_cndmask_b32', d, d, t1, 'vcc')

    def dma_issue(self, vpat, cpr, ldb, lds_base, u0, u1, srd=SRD_B, row0=0):
        a = self.a
        U = cpr // 2
        res = []
        a.s('s_lshl_b32', 's57', sW, 10)
        for u in range(u0, u1):
            a.s('s_add_u32', 'm0', 's57', lds_base + u * 8192)
            so = (row0 + (u // U) * 256) * ldb
            if so:
                a.s('s_mov_b32', 's58', so)
            res.append(a.dma(vr(vpat + u % U), sr(srd, 4), 's58' if so else '0'))
        return res

    def tr_bases(self, vb, P, kh_bytes, rot, tmp):
        a = self.a
        t0, t1 = vr(tmp), vr(tmp + 1)
        a.v('v_bfe_u32', t0, vTID, 2, 2)
        a.v('v_bfe_u32', t1, vTID, 4, 1)
        a.v('v_lshl_or_b32', t0, t1, 2, t0)
        a.v('v_lshl_or_b32', t1, vG, 3, t0)
        a.v('v_mul_u32_u24', vr(vb), P, t1)
        a.v('v_xor_b32', t1, 4, t1)
        a.v('v_mul_u32_u24', vr(vb + 1), P, t1)
        a.v('v_and_b32', t0, 3, vTID)
        a.v('v_lshlrev_b32', t0, 3, t0)
        a.s('s_mul_i32', 's56', sKH, kh_bytes)
        if rot:
            a.s('s_mul_i32', 's59', sKH, 96)
            a.s('s_add_u32', 's59', 's59', 's56')
            a.s('s_mul_i32', 's60', sKH, 64)
            a.s('s_sub_u32', 's60', 's56', 's60')
            a.v('v_add3_u32', vr(vb + 2), vr(vb), t0, 's60')
            a.v('v_add3_u32', vr(vb + 3), vr(vb + 1), t0, 's60')
            a.v('v_add3_u32', vr(vb), vr(vb), t0, 's59')
            a.v('v_add3_u32', vr(vb + 1), vr(vb + 1), t0, 's59')
        else:
            a.v('v_add3_u32', vr(vb), vr(vb), t0, 's56')
            a.v('v_add3_u32', vr(vb + 1), vr(vb + 1), t0, 's56')

    def gemm_loop(self, nrt, nct, koffs, vA, vACC, vB, vTB, rot, orient, syncs=None, stats=None, cs=None, acc_init=True,
                  hook=None):
        a = self.a
        ns = len(koffs)
        nb = nct * 4
        bump = [0]
        nbase = 4 if rot else 2

        def reads(i):
            if syncs and i in syncs:
                a.wait_vm(syncs[i])
                a.barrier()
            buf = vB + (i & 1) * nb
            for u in range(nct):
                off = koffs[i] + 32 * u - bump[0]
                if off + 64 > 65535:
                    inc = koffs[i] - bump[0]
                    for b in range(nbase):
                        a.v('v_add_u32', vr(vTB + b), inc, vr(vTB + b))
                    bump[0] += inc
                    off = koffs[i] + 32 * u - bump[0]
                bsel = 2 if (rot and u >= 2) else 0
                a.dsr('ds_read_b64_tr_b16', vr(buf + 4 * u, 2), vr(vTB + bsel), off)
                a.dsr('ds_read_b64_tr_b16', vr(buf + 4 * u + 2, 2), vr(vTB + bsel + 1), off)

        reads(0)
        for i in range(ns):
            if i + 1 < ns:
                reads(i + 1)
            buf = vB + (i & 1) * nb
            for u in range(nct):
                for r in range(nrt):
                    acc = vr(vACC + (r * nct + u) * 4, 4)
                    A = vr(vA + (r * ns + i) * 4, 4)
                    B = vr(buf + 4 * u, 4)
                    c = '0' if (i == 0 and acc_init) else acc
                    if orient[u]:
                        a.mfma(acc, B, A, c)
                    else:
                        a.mfma(acc, A, B, c)
            if stats is not None:
                for r in range(nrt):
                    for q in range(4):
                        x = vr(vA + (r * ns + i) * 4 + q)
                        a.v('v_dot2c_f32_bf16', vr(stats + r * 4 + (q & 1)), 's61', x)
                        a.v('v_dot2c_f32_bf16', vr(stats + r * 4 + 2 + (q & 1)), x, x)
            if cs is not None:
                lab = a.label()
                a.s('s_cmp_lg_u32', sRG, i & 3)
                a.branch('s_cbranch_scc1', lab)
                a.begin_cond()
                for q in range(4):
                    for u in range(nct):
                        a.v('v_dot2c_f32_bf16', vr(cs + u), 's61', vr(buf + 4 * u + q))
                a.end_cond()
                a.place(lab)
            if hook:
                hook(i)
        return bump[0]

    def greduce(self, v, tmp):
        a = self.a
        a.v('v_mov_b32', tmp, v)
        a.v('v_permlane32_swap_b32', tmp, v)
        a.v('v_add_f32', v, v, tmp)
        a.v('v_mov_b32', tmp, v)
        a.v('v_permlane16_swap_b32', tmp, v)
        a.v('v_add_f32', v, v, tmp)

    def ln_finalize(self, vs, vq, al, be, t0, t1, t2, double, st_m=None, st_r=None):
        a = self.a
        a.v('v_mul_f32', t0, f32(1.0 / D), vs)
        a.v('v_mul_f32', t1, f32(1.0 / D), vq)
        a.v('v_fma_f32', t1, '-' + t0, t0, t1)
        a.v('v_max_f32', t1, 0, t1)
        self.bf16r(be, t0)
        self.bf16r(t2, t1)
        a.v('v_add_f32', t2, f32(1e-5), t2)
        self.bf16r(t2, t2)
        a.v('v_sqrt_f32', t2, t2)
        self.bf16r(t2, t2)
        a.v('v_rcp_f32', al, t2)
        if st_m is not None:
            a.v('v_mov_b32', st_m, be)
            a.v('v_mov_b32', st_r, al)
        if not double:
            a.v('v_mul_f32', be, be, al)
        else:
            a.v('v_sub_f32', t0, t0, be)
            a.v('v_mul_f32', t0, t0, al)
            self.bf16r(t0, t0)
            a.v('v_mul_f32', t1, t1, al)
            a.v('v_mul_f32', t1, t1, al)
            self.bf16r(t1, t1)
            a.v('v_add_f32', t1, f32(1e-5), t1)
            self.bf16r(t1, t1)
            a.v('v_sqrt_f32', t1, t1)
            self.bf16r(t1, t1)
            a.v('v_rcp_f32', t1, t1)
            a.v('v_fma_f32', be, be, al, t0)
            a.v('v_mul_f32', be, be, t1)
            a.v('v_mul_f32', al, al, t1)

    def gelu_pair(self, dst, y0, y1, t0, t1, t2):
        a = self.a
        c0 = -2.0 * math.log2(math.e) * math.sqrt(2.0 / math.pi)
        c1 = c0 * 0.044715
        self.bf16r2(y0, y1, y0, y1, t0)
        for y, t in ((y0, t0), (y1, t1)):
            a.v('v_mul_f32', t, y, y)
            a.v('v_fma_f32', t, t, 's62', 's63') if False else None
        for y, t in ((y0, t0), (y1, t1)):
            a.v('v_fmaak_f32', t, t, 'v5', f32(c0)) if False else a.v('v_fma_f32', t, t, 'v5', 'v6')
        for y, t in ((y0, t0), (y1, t1)):
            a.v('v_mul_f32', t, t, y)
        for y, t in ((y0, t0), (y1, t1)):
            a.v('v_exp_f32', t, t)
        for y, t in ((y0, t0), (y1, t1)):
            a.v('v_add_f32', t, 1.0, t)
        for y, t in ((y0, t0), (y1, t1)):
            a.v('v_rcp_f32', t, t)
        for y, t in ((y0, t0), (y1, t1)):
            a.v('v_mul_f32', y, y, t)
        a.v('v_cvt_pk_bf16_f32', dst, y0, y1)

    def gelu_consts(self):
        a = self.a
        c0 = -2.0 * math.log2(math.e) * math.sqrt(2.0 / math.pi)
        a.v('v_mov_b32', 'v5', f32(c0 * 0.044715))
        a.v('v_mov_b32', 'v6', f32(c0))

    def get_nonce(self):
        a = self.a
        self.srd(SRD_E, P_DBG, 0, 256)
        a.v('v_mov_b32', 'v250', 0)
        lab = a.label()
        a.s('s_or_b32', 's56', 's2', sW)
        a.s('s_cmp_lg_u32', 's56', 0)
        a.branch('s_cbranch_scc1', lab)
        a.begin_cond()
        a.raw('s_memrealtime s[56:57]', 'smem', wr=['s[56:57]'])
        a.wait_lgkm0()
        a.s('s_or_b32', 's56', 's56', 1)
        a.s('s_or_b32', 's57', 's57', '0x40000000')
        a.v('v_mov_b32', 'v252', 's56')
        a.v('v_mov_b32', 'v253', 's57')
        a.s('s_mov_b64', 's[58:59]', 'exec')
        a.s('s_mov_b64', 'exec', 1)
        a.bs('buffer_store_dwordx2', 'v[252:253]', 'v250', sr(SRD_E, 4), flags='sc1')
        a.s('s_mov_b64', 'exec', 's[58:59]')
        a.end_cond()
        a.place(lab)

    def read_nonce(self):
        a = self.a
        loop, done = a.label(), a.label()
        a.v('v_mov_b32', 'v250', 0)
        a.s('s_mov_b32', 's58', 0)
        a.place(loop)
        a.raw(f'buffer_load_dwordx2 v[252:253], v250, {sr(SRD_E, 4)}, 0 offen sc1', 'other')
        a.raw('s_waitcnt vmcnt(0)', 'other')
        a.raw('v_readfirstlane_b32 s54, v252', 'other', wr=['s54'])
        a.raw('v_readfirstlane_b32 s55, v253', 'other', wr=['s55'])
        a.raw('s_add_u32 s58, s58, 1', 'other')
        a.raw('s_nop 4', 'other')
        a.raw('s_cmp_lg_u32 s54, 0', 'other')
        a.raw(f's_cbranch_scc1 {done}', 'other')
        a.raw('s_sleep 2', 'other')
        a.raw('s_cmp_lt_u32 s58, 0x40000', 'other')
        a.raw(f's_cbranch_scc1 {loop}', 'other')
        a.place(done)
        a.wait_vm0()

    def signal(self, stage, sidx, last_store):
        a = self.a
        a.wait_vm(last_store)
        a.barrier()
        lab = a.label()
        a.s('s_cmp_lg_u32', sW, 0)
        a.branch('s_cbranch_scc1', lab)
        a.begin_cond()
        a.s('s_add_u32', 's56', sr(sNON), 2 * stage)
        a.v('v_mov_b32', 'v252', 's56')
        a.v('v_mov_b32', 'v253', sr(sNON + 1))
        a.v('v_mov_b32', 'v250', 0)
        a.s('s_lshl_b32', 's57', sidx, 3)
        a.s('s_add_u32', 's57', 's57', stage * 4096)
        a.s('s_mov_b64', 's[58:59]', 'exec')
        a.s('s_mov_b64', 'exec', 1)
        a.bs('buffer_store_dwordx2', 'v[252:253]', 'v250', sr(SRD_F, 4), 's57', flags='sc1')
        a.s('s_mov_b64', 'exec', 's[58:59]')
        a.end_cond()
        a.place(lab)

    def wait_flags(self, stage, sfirst, n, lo_skip=None, hi_skip=None):
        a = self.a
        lab, loop, done = a.label(), a.label(), a.label()
        a.s('s_cmp_lg_u32', sW, 0)
        a.branch('s_cbranch_scc1', lab)
        a.begin_cond()
        a.s('s_add_u32', 's56', sr(sNON), 2 * stage)
        a.v('v_add_u32', 'v250', sfirst, vL)
        a.v('v_lshlrev_b32', 'v250', 3, 'v250')
        a.v('v_add_u32', 'v250', stage * 4096, 'v250')
        a.s('s_mov_b64', 's[58:59]', 'exec')
        if lo_skip is None:
            a.s('s_mov_b64', 'exec', (1 << n) - 1 if n < 32 else -1)
        else:
            a.v('v_cmp_le_u32', 'vcc', lo_skip, vL)
            a.v('v_cmp_gt_u32', 's[60:61]', hi_skip, vL)
            a.s('s_and_b64', 'exec', 'vcc', 's[60:61]')
        a.s('s_mov_b32', 's57', 0)
        a.place(loop)
        a.raw(f'buffer_load_dwordx2 v[252:253], v250, {sr(SRD_F, 4)}, 0 offen sc1', 'other')
        a.raw('s_waitcnt vmcnt(0)', 'other')
        a.raw('v_cmp_ne_u32 vcc, s56, v252', 'other')
        a.raw(f'v_cmp_ne_u32 s[60:61], {sr(sNON + 1)}, v253', 'other')
        a.raw('s_add_u32 s57, s57, 1', 'other')
        a.raw('s_nop 4', 'other')
        a.raw('s_or_b64 vcc, vcc, s[60:61]', 'other')
        a.raw(f's_cbranch_vccz {done}', 'other')
        a.raw('s_sleep 1', 'other')
        a.raw('s_cmp_lt_u32 s57, 0x40000', 'other')
        a.raw(f's_cbranch_scc1 {loop}', 'other')
        a.place(done)
        a.s('s_mov_b64', 'exec', 's[58:59]')
        a.end_cond()
        a.place(lab)
        a.barrier()

    V_PAT = 8
    V_TB = 16
    V_ST = 20
    V_CS = 28
    V_T = 36
    V_ACC = 52
    V_B = 108
    V_A = 144

    XCH64 = 122880
    CST = 155648

    def tile64_ids(self):
        a = self.a
        a.s('s_lshr_b32', 's64', sI, 3)
        a.s('s_lshl_b32', 's56', sXCD, 2)
        a.s('s_add_u32', 's64', 's64', 's56')
        a.s('s_and_b32', 's65', sI, 7)
        a.s('s_lshl_b32', 's66', 's64', 2)
        a.s('s_add_u32', 's66', 's66', sRG)

    def b64_setup(self):
        a = self.a
        self.tile64_ids()
        a.s('s_mul_i32', 's67', 's65', 160)
        self.dma_patterns(self.V_PAT, 10, 1280, ('lin', 's67'), self.V_T)

    def colsum_pre(self, nct, P, lds_b, nk, rotv):
        a = self.a
        T = self.V_T
        cs = self.V_CS
        b0, b1 = vr(T + 8), vr(T + 9)
        a.v('v_bfe_u32', vr(T), vTID, 2, 2)
        a.v('v_bfe_u32', vr(T + 1), vTID, 4, 1)
        a.v('v_lshl_or_b32', vr(T), vr(T + 1), 2, vr(T))
        a.v('v_lshl_or_b32', vr(T + 1), vG, 3, vr(T))
        a.v('v_mul_u32_u24', b0, P, vr(T + 1))
        a.v('v_xor_b32', vr(T + 1), 4, vr(T + 1))
        a.v('v_mul_u32_u24', b1, P, vr(T + 1))
        a.v('v_and_b32', vr(T), 3, vTID)
        a.v('v_lshlrev_b32', vr(T), 3, vr(T))
        a.s('s_mul_i32', 's56', sW, 32 * P)
        a.s('s_add_u32', 's56', 's56', lds_b)
        a.v('v_add3_u32', b0, b0, vr(T), 's56')
        a.v('v_add3_u32', b1, b1, vr(T), 's56')
        for u in range(nct):
            a.v('v_mov_b32', vr(cs + u), 0)
        nb = nct * 4
        rounds = (nk + 7) // 8
        for rd in range(rounds):
            lab = None
            if rd * 8 + 8 > nk:
                lab = a.label()
                a.s('s_cmp_ge_u32', sW, nk - rd * 8)
                a.branch('s_cbranch_scc1', lab)
                a.begin_cond()
            if rd:
                a.v('v_add_u32', b0, 8 * 32 * P, b0)
                a.v('v_add_u32', b1, 8 * 32 * P, b1)
            buf = self.V_B + (rd & 1) * nb
            for u in range(nct):
                a.dsr('ds_read_b64_tr_b16', vr(buf + 4 * u, 2), b0, 32 * u)
                a.dsr('ds_read_b64_tr_b16', vr(buf + 4 * u + 2, 2), b1, 32 * u)
            for q in range(4):
                for u in range(nct):
                    a.v('v_dot2c_f32_bf16', vr(cs + u), 's61', vr(buf + 4 * u + q))
            if lab:
                a.end_cond()
                a.place(lab)
        self.colsum_reduce(nct, cs)

    def colsum_reduce(self, nct, cs, rot=False):
        a = self.a
        T = self.V_T
        for u in range(nct):
            self.greduce(vr(cs + u), vr(T))
        a.s('s_lshl_b32', 's56', sW, 9)
        a.s('s_add_u32', 's56', 's56', self.CST)
        a.v('v_lshl_add_u32', vr(T), vN, 2, 's56')
        a.s('s_mov_b64', 's[58:59]', 'exec')
        a.s('s_mov_b64', 'exec', '0xffff')
        for u in range(nct):
            a.dsw('ds_write_b32', vr(T), vr(cs + u), 64 * u)
        a.s('s_mov_b64', 'exec', 's[58:59]')
        a.wait_lgkm0()
        a.barrier()
        lab = a.label()
        a.s('s_cmp_ge_u32', sW, 2)
        a.branch('s_cbranch_scc1', lab)
        a.begin_cond()
        a.v('v_lshlrev_b32', vr(T), 2, vTID)
        a.v('v_add_u32', vr(T), self.CST, vr(T))
        for w in range(8):
            a.dsr('ds_read_b32', vr(T + 1 + w), vr(T), 512 * w)
        for w in range(1, 8):
            a.v('v_add_f32', vr(T + 1), vr(T + 1), vr(T + 1 + w))
        a.dsw('ds_write_b32', vr(T), vr(T + 1), 4096)
        a.wait_lgkm0()
        a.end_cond()
        a.place(lab)
        a.barrier()

    def stage64(self, st, pre_b=None, post_loop=None, post_store=None):
        a = self.a
        T = self.V_T
        K = F if st == 6 else D
        NJ = K // 32
        ns = NJ // 2
        vA = 128
        self.V_B = 72
        wptr = {2: P_WO, 3: P_W1, 4: P_W2, 6: P_W4}[st]
        aoff = {2: O_OFF, 3: H_OFF, 4: HH_OFF, 6: G_OFF}[st]
        self.tile64_ids()
        a.s('s_mov_b32', 's61', '0x3f803f80')
        self.srd(SRD_A, P_WS, aoff, S * K * 2)
        self.tr_bases(self.V_TB, 160, 5120, True, T)
        aloads = []
        if st != 4:
            a.v('v_lshlrev_b32', vr(T), 4, vL)
            a.s('s_mul_i32', 's68', 's66', NJ * 1024)
            a.s('s_lshl_b32', 's56', sKH, 10)
            a.s('s_add_u32', 's68', 's68', 's56')
            for i in range(ns):
                aloads.append(a.bl('buffer_load_dwordx4', vr(vA + 4 * i, 4), vr(T), sr(SRD_A, 4), 's68', (i & 1) * 2048, 'sc1'))
                if i & 1:
                    a.s('s_add_u32', 's68', 's68', 4096)
        else:
            a.s('s_lshl_b32', 's56', 's66', 4)
            a.v('v_add_u32', vr(T + 4), 's56', vN)
            a.v('v_lshlrev_b32', vr(T + 5), 8, vG)
            for gi, sh in enumerate((1, -1, 2, -2)):
                d = vr(T + gi)
                a.v('v_subrev_u32', vr(T + 6), sh, vr(T + 4))
                a.v('v_lshrrev_b32', vr(T + 7), 4, vr(T + 6))
                a.v('v_mul_u32_u24', vr(T + 7), NJ * 1024, vr(T + 7))
                a.v('v_and_b32', d, 15, vr(T + 6))
                a.v('v_lshl_add_u32', d, d, 4, vr(T + 5))
                a.v('v_add_u32', d, d, vr(T + 7))
                a.v('v_cmp_lt_u32', 'vcc', S - 1, vr(T + 6))
                a.v('v_bfrev_b32', vr(T + 7), 1)
                a.v('v_cndmask_b32', d, d, vr(T + 7), 'vcc')
            a.s('s_lshl_b32', 's68', sKH, 10)
            a.s('s_cmp_eq_u32', sKH, 0)
            a.s('s_cselect_b64', 's[70:71]', -1, 0)
            for i in range(ns):
                g0, g1 = (2 * i) // 5, (2 * i + 1) // 5
                if g0 == g1:
                    vo = vr(T + g0)
                else:
                    vo = vr(T + 8)
                    a.v('v_cndmask_b32', vo, vr(T + g1), vr(T + g0), 's[70:71]')
                aloads.append(a.bl('buffer_load_dwordx4', vr(vA + 4 * i, 4), vo, sr(SRD_A, 4), 's68', (i & 1) * 2048, 'sc1'))
                if i & 1:
                    a.s('s_add_u32', 's68', 's68', 4096)
        vFO = 'v7'
        a.v('v_lshrrev_b32', vr(T + 9), 1, vG)
        a.v('v_lshlrev_b32', vFO, 8, vr(T + 9))
        a.v('v_lshl_add_u32', vFO, vN, 4, vFO)
        a.v('v_and_b32', vr(T + 9), 1, vG)
        a.v('v_lshl_add_u32', vFO, vr(T + 9), 3, vFO)
        a.s('s_mul_i32', 's69', 's66', 20480)
        a.s('s_mul_i32', 's56', 's65', 5)
        a.s('s_mul_i32', 's57', sKH, 3)
        a.s('s_add_u32', 's56', 's56', 's57')
        a.s('s_lshl_b32', 's72', 's56', 5)
        a.s('s_lshl_b32', 's56', 's56', 9)
        a.s('s_add_u32', 's69', 's69', 's56')
        vR = 112
        if st == 2:
            self.srd(SRD_R, P_X, 0, ACT)
            a.s('s_lshl_b32', 's56', 's66', 4)
            a.v('v_add_u32', vr(T + 9), 's56', vN)
            a.v('v_mul_u32_u24', vr(T + 9), 1280, vr(T + 9))
            a.v('v_lshl_add_u32', vr(T + 9), vG, 3, vr(T + 9))
            for u in range(3):
                a.bl('buffer_load_dwordx2', vr(vR + 2 * u, 2), vr(T + 9), sr(SRD_R, 4), 's72', 32 * u)
        elif st in (4, 6):
            self.srd(SRD_R, P_WS, H_OFF, ACT)
            for u in range(3):
                a.bl('buffer_load_dwordx2', vr(vR + 2 * u, 2), vFO, sr(SRD_R, 4), 's69', 512 * u, 'sc1')
            if st == 4:
                self.srd(SRD_E2, P_WS, ST_OFF, S * 8)
                a.s('s_lshl_b32', 's56', 's66', 7)
                a.v('v_lshlrev_b32', vr(T + 9), 3, vN)
                a.bl('buffer_load_dwordx2', vr(vR + 12, 2), vr(T + 9), sr(SRD_E2, 4), 's56', 0, 'sc1')
            else:
                self.srd(SRD_E2, P_WS, X1_OFF, ACT)
                for u in range(3):
                    a.bl('buffer_load_dwordx2', vr(vR + 6 + 2 * u, 2), vFO, sr(SRD_E2, 4), 's69', 512 * u, 'sc1')
        syncs = {}
        hook = None
        if st != 6:
            a.wait_vm(pre_b[-1])
            a.barrier()
            koffs = [i * 10240 for i in range(ns)]
            if st == 3:
                self.colsum_pre(5, 160, 0, 20, None)
                for q in range(4):
                    a.v('v_mov_b32', vr(self.V_ST + q), 0)
        else:
            a.wait_vm(pre_b[-1])
            a.barrier()
            koffs = [((2 * i) // 8 % 3) * 40960 + ((2 * i) % 8) * 5120 for i in range(ns)]
            pend = {}

            def hook(i, pend=pend):
                pass
        if st == 6:
            self.loop6(vA, ns, pre_b)
        else:
            self.gemm_loop(1, 5, koffs, vA, self.V_ACC, self.V_B, self.V_TB, True, [True] * 5,
                           stats=self.V_ST if st == 3 else None)
        ACC = self.V_ACC
        a.s('s_lshl_b32', 's56', sW, 12)
        a.s('s_xor_b32', 's57', 's56', 4 << 12)
        a.s('s_add_u32', 's56', 's56', self.XCH64)
        a.s('s_add_u32', 's57', 's57', self.XCH64)
        a.v('v_lshl_add_u32', vr(T), vL, 4, 's56')
        a.v('v_lshl_add_u32', vr(T + 1), vL, 4, 's57')
        if st == 3:
            st_ = self.V_ST
            a.v('v_add_f32', vr(st_), vr(st_), vr(st_ + 1))
            a.v('v_add_f32', vr(st_ + 1), vr(st_ + 2), vr(st_ + 3))
            self.greduce(vr(st_), vr(T + 2))
            self.greduce(vr(st_ + 1), vr(T + 2))
            a.dsw('ds_write_b64', vr(T), vr(st_, 2), 3072)
        for u in range(3):
            a.dsw('ds_write_b128', vr(T), vr(ACC + (2 + u) * 4, 4), 1024 * u)
        a.wait_lgkm0()
        a.barrier()
        if post_loop:
            post_loop()
        a.s('s_lshl_b32', 's56', sKH, 10)
        a.v('v_add_u32', vr(T + 2), 's56', vr(T + 1))
        X = self.V_B
        for u in range(3):
            a.dsr('ds_read_b128', vr(X + 4 * u, 4), vr(T + 2), 1024 * u)
        if st == 3:
            a.dsr('ds_read_b64', vr(X + 12, 2), vr(T + 1), 3072)
            a.s('s_mul_i32', 's56', sKH, 192)
            a.s('s_add_u32', 's56', 's56', self.CST + 4096)
            a.v('v_lshl_add_u32', vr(T + 3), vG, 4, 's56')
            for u in range(3):
                a.dsr('ds_read_b128', vr(X + 16 + 4 * u, 4), vr(T + 3), 64 * u)
        for u in range(3):
            for r in range(4):
                a.v('v_add_f32', vr(ACC + 4 * u + r), vr(ACC + 4 * u + r), vr(X + 4 * u + r))
        ooff = {2: H_OFF, 3: HH_OFF, 4: X1_OFF}.get(st)
        if st == 6:
            self.srd(SRD_O, P_OUT, 0, ACT)
        else:
            self.srd(SRD_O, P_WS, ooff, ACT)
        PK = X + 32
        if st == 3:
            st_ = self.V_ST
            a.v('v_add_f32', vr(st_), vr(st_), vr(X + 12))
            a.v('v_add_f32', vr(st_ + 1), vr(st_ + 1), vr(X + 13))
            al, be = vr(T + 4), vr(T + 5)
            self.ln_finalize(vr(st_), vr(st_ + 1), al, be, vr(T + 6), vr(T + 7), vr(T + 8), True, vr(T + 10), vr(T + 11))
            self.gelu_consts()
            for u in range(3):
                for r in range(4):
                    a.v('v_mul_f32', vr(X + 16 + 4 * u + r), vr(X + 16 + 4 * u + r), be)
                    a.v('v_fma_f32', vr(ACC + 4 * u + r), vr(ACC + 4 * u + r), al, '-' + vr(X + 16 + 4 * u + r))
                for h in range(2):
                    self.gelu_pair(vr(PK + 2 * u + h), vr(ACC + 4 * u + 2 * h), vr(ACC + 4 * u + 2 * h + 1), vr(T + 6), vr(T + 7), None)
            self.srd(SRD_E2, P_WS, ST_OFF, S * 8)
            lab = a.label()
            a.s('s_or_b32', 's56', 's65', sKH)
            a.s('s_cmp_lg_u32', 's56', 0)
            a.branch('s_cbranch_scc1', lab)
            a.begin_cond()
            a.s('s_lshl_b32', 's56', 's66', 7)
            a.v('v_lshlrev_b32', vr(T + 9), 3, vN)
            a.s('s_mov_b64', 's[58:59]', 'exec')
            a.s('s_mov_b64', 'exec', '0xffff')
            a.bs('buffer_store_dwordx2', vr(T + 10, 2), vr(T + 9), sr(SRD_E2, 4), 's56', 0, 'sc1')
            a.s('s_mov_b64', 'exec', 's[58:59]')
            a.end_cond()
            a.place(lab)
        else:
            for u in range(3):
                for h in range(2):
                    y0, y1 = vr(ACC + 4 * u + 2 * h), vr(ACC + 4 * u + 2 * h + 1)
                    r0, r1, t = vr(T + 4), vr(T + 5), vr(T + 6)
                    self.bf16r2(y0, y1, y0, y1, t)
                    a.v('v_lshlrev_b32', r0, 16, vr(vR + 2 * u + h))
                    a.v('v_and_b32', r1, '0xffff0000', vr(vR + 2 * u + h))
                    if st == 4:
                        a.v('v_sub_f32', r0, r0, vr(vR + 12))
                        a.v('v_sub_f32', r1, r1, vr(vR + 12))
                        self.bf16r2(r0, r1, r0, r1, t)
                        a.v('v_mul_f32', r0, r0, vr(vR + 13))
                        a.v('v_mul_f32', r1, r1, vr(vR + 13))
                        self.bf16r2(r0, r1, r0, r1, t)
                    if st == 6:
                        x0, x1 = vr(T + 7), vr(T + 8)
                        a.v('v_lshlrev_b32', x0, 16, vr(vR + 6 + 2 * u + h))
                        a.v('v_and_b32', x1, '0xffff0000', vr(vR + 6 + 2 * u + h))
                        a.v('v_add_f32', y0, y0, x0)
                        a.v('v_add_f32', y1, y1, x1)
                        self.bf16r2(y0, y1, y0, y1, t)
                    a.v('v_add_f32', y0, y0, r0)
                    a.v('v_add_f32', y1, y1, r1)
                    a.v('v_cvt_pk_bf16_f32', vr(PK + 2 * u + h), y0, y1)
        last = None
        if st == 6:
            a.s('s_lshl_b32', 's56', 's66', 4)
            a.v('v_add_u32', vr(T + 9), 's56', vN)
            a.v('v_mul_u32_u24', vr(T + 9), 1280, vr(T + 9))
            a.v('v_lshl_add_u32', vr(T + 9), vG, 3, vr(T + 9))
            vo, so, step, fl = vr(T + 9), 's72', 32, ''
        else:
            vo, so, step, fl = vFO, 's69', 512, 'sc1'
        a.s('s_lshl_b32', 's56', sKH, 31)
        a.v('v_or_b32', vr(T + 8), 's56', vo)
        for u in range(3):
            last = a.bs('buffer_store_dwordx2', vr(PK + 2 * u, 2), vo if u < 2 else vr(T + 8), sr(SRD_O, 4), so, step * u, fl)
        if post_store:
            post_store()
        return last

    def loop6(self, vA, ns, pre_b):
        a = self.a
        nct, nb = 5, 20
        vB, vTB, vACC = self.V_B, self.V_TB, self.V_ACC
        NCH = 7
        dm = {0: pre_b[4], 1: pre_b[9], 2: pre_b[14]}
        cur = [0]

        def setbase(slot):
            inc = slot * 40960 - cur[0]
            if inc:
                for b in range(4):
                    if inc > 0:
                        a.v('v_add_u32', vr(vTB + b), inc, vr(vTB + b))
                    else:
                        a.v('v_subrev_u32', vr(vTB + b), -inc, vr(vTB + b))
                cur[0] += inc

        def reads(i):
            c = i // 4
            if i % 4 == 0 and c >= 1:
                a.wait_lgkm0()
                if c >= 3:
                    a.wait_vm(dm[c])
                a.barrier()
                if c + 2 < NCH:
                    cc = c + 2
                    nwg = 5 if cc < NCH - 1 else 4
                    r = self.dma_issue(self.V_PAT, 10, 1280, (cc % 3) * 40960, 0, nwg, row0=cc * 256)
                    dm[cc] = r[-1]
                setbase(c % 3)
            buf = vB + (i & 1) * nb
            for u in range(nct):
                off = ((2 * i) % 8) * 5120 + 32 * u
                bsel = 2 if u >= 2 else 0
                a.dsr('ds_read_b64_tr_b16', vr(buf + 4 * u, 2), vr(vTB + bsel), off)
                a.dsr('ds_read_b64_tr_b16', vr(buf + 4 * u + 2, 2), vr(vTB + bsel + 1), off)

        reads(0)
        for i in range(ns):
            if i + 1 < ns:
                reads(i + 1)
            buf = vB + (i & 1) * nb
            for u in range(nct):
                acc = vr(vACC + u * 4, 4)
                a.mfma(acc, vr(buf + 4 * u, 4), vr(vA + i * 4, 4), '0' if i == 0 else acc)

    def b64_issue(self, st, u0=0, u1=None):
        wptr = {2: P_WO, 3: P_W1, 4: P_W2, 6: P_W4}[st]
        K = F if st == 6 else D
        if u0 == 0:
            self.srd(SRD_B, wptr, 0, K * 1280)
        if u1 is None:
            u1 = 15 if st == 6 else 13
        return self.dma_issue(self.V_PAT, 10, 1280, 0, u0, u1)

    XCH5 = 0

    def tile128_ids(self):
        a = self.a
        a.s('s_lshr_b32', 's64', sI, 4)
        a.s('s_lshl_b32', 's56', sXCD, 1)
        a.s('s_add_u32', 's64', 's64', 's56')
        a.s('s_and_b32', 's65', sI, 15)

    def b5_setup(self):
        a = self.a
        self.tile128_ids()
        a.s('s_mul_i32', 's67', 's65', 27)
        a.s('s_lshr_b32', 's67', 's67', 2)
        a.s('s_lshl_b32', 's73', 's67', 5)
        self.dma_patterns(self.V_PAT, 14, 3456, ('lin', 's73'), self.V_T)

    def b5_issue(self, u0=0, u1=18):
        if u0 == 0:
            self.srd(SRD_B, P_W3, 0, D * 3456)
        return self.dma_issue(self.V_PAT, 14, 3456, 0, u0, u1)

    def stage5(self, pre_b, post_loop=None, post_store=None):
        a = self.a
        T = self.V_T
        vA = 164
        self.V_B = 108
        ns = 10
        self.tile128_ids()
        a.s('s_mul_i32', 's67', 's65', 27)
        a.s('s_lshr_b32', 's67', 's67', 2)
        a.s('s_mov_b32', 's61', '0x3f803f80')
        self.srd(SRD_A, P_WS, X1_OFF, ACT)
        self.tr_bases(self.V_TB, 224, 7168, False, T)
        a.s('s_lshl_b32', 's66', 's64', 3)
        a.s('s_lshl_b32', 's56', sRG, 1)
        a.s('s_add_u32', 's66', 's66', 's56')
        a.s('s_add_u32', 's74', 's66', sKH)
        a.s('s_xor_b32', 's56', sKH, 1)
        a.s('s_add_u32', 's75', 's66', 's56')
        a.v('v_lshlrev_b32', vr(T), 4, vL)
        a.s('s_lshl_b32', 's56', sKH, 10)
        a.s('s_mul_i32', 's68', 's74', 20480)
        a.s('s_add_u32', 's68', 's68', 's56')
        a.s('s_mul_i32', 's69', 's75', 20480)
        a.s('s_add_u32', 's69', 's69', 's56')
        for i in range(ns):
            a.bl('buffer_load_dwordx4', vr(vA + 4 * i, 4), vr(T), sr(SRD_A, 4), 's68', (i & 1) * 2048, 'sc1')
            a.bl('buffer_load_dwordx4', vr(vA + 40 + 4 * i, 4), vr(T), sr(SRD_A, 4), 's69', (i & 1) * 2048, 'sc1')
            if i & 1:
                a.s('s_add_u32', 's68', 's68', 4096)
                a.s('s_add_u32', 's69', 's69', 4096)
        a.wait_vm(pre_b[-1])
        a.barrier()
        self.CST = 147456 + 4096
        self.colsum_pre(7, 224, 0, 20, None)
        for q in range(8):
            a.v('v_mov_b32', vr(self.V_ST + q), 0)
        koffs = [i * 2 * 7168 for i in range(ns)]
        self.gemm_loop(2, 7, koffs, vA, self.V_ACC, self.V_B, self.V_TB, False, [True] * 7, stats=self.V_ST)
        ACC = self.V_ACC
        st_ = self.V_ST
        for r in range(2):
            a.v('v_add_f32', vr(st_ + 4 * r), vr(st_ + 4 * r), vr(st_ + 4 * r + 1))
            a.v('v_add_f32', vr(st_ + 4 * r + 1), vr(st_ + 4 * r + 2), vr(st_ + 4 * r + 3))
            self.greduce(vr(st_ + 4 * r), vr(T + 2))
            self.greduce(vr(st_ + 4 * r + 1), vr(T + 2))
        a.wait_lgkm0()
        a.barrier()
        a.s('s_lshl_b32', 's56', sW, 13)
        a.v('v_lshl_add_u32', vr(T), vL, 4, 's56')
        a.s('s_xor_b32', 's57', 's56', 4 << 13)
        a.v('v_lshl_add_u32', vr(T + 1), vL, 4, 's57')
        XO = self.XCH5
        a.dsw('ds_write_b64', vr(T), vr(st_ + 4, 2), XO + 7168)
        for u in range(7):
            a.dsw('ds_write_b128', vr(T), vr(ACC + 28 + 4 * u, 4), XO + 1024 * u)
        a.wait_lgkm0()
        a.barrier()
        X = self.V_B
        for u in range(7):
            a.dsr('ds_read_b128', vr(X + 4 * u, 4), vr(T + 1), XO + 1024 * u)
        a.dsr('ds_read_b64', vr(X + 28, 2), vr(T + 1), XO + 7168)
        a.v('v_lshlrev_b32', vr(T + 3), 4, vG)
        a.v('v_add_u32', vr(T + 3), self.CST + 4096, vr(T + 3))
        CSR = ACC + 28
        for u in range(7):
            a.dsr('ds_read_b128', vr(CSR + 4 * u, 4), vr(T + 3), 64 * u)
        if post_loop:
            a.wait_lgkm0()
            a.barrier()
            post_loop()
        a.v('v_add_f32', vr(st_), vr(st_), vr(X + 28))
        a.v('v_add_f32', vr(st_ + 1), vr(st_ + 1), vr(X + 29))
        al, be = vr(T + 4), vr(T + 5)
        self.ln_finalize(vr(st_), vr(st_ + 1), al, be, vr(T + 6), vr(T + 7), vr(T + 8), False)
        self.gelu_consts()
        self.srd(SRD_O, P_WS, G_OFF, G_BYTES)
        vFO = 'v7'
        a.v('v_lshrrev_b32', vr(T + 9), 1, vG)
        a.v('v_lshlrev_b32', vFO, 8, vr(T + 9))
        a.v('v_lshl_add_u32', vFO, vN, 4, vFO)
        a.v('v_and_b32', vr(T + 9), 1, vG)
        a.v('v_lshl_add_u32', vFO, vr(T + 9), 3, vFO)
        a.s('s_mul_i32', 's69', 's74', 54 * 1024)
        a.s('s_lshl_b32', 's56', 's67', 9)
        a.s('s_add_u32', 's69', 's69', 's56')
        PK = X + 32
        last = None
        for u in range(7):
            for r in range(4):
                a.v('v_add_f32', vr(ACC + 4 * u + r), vr(ACC + 4 * u + r), vr(X + 4 * u + r))
                a.v('v_mul_f32', vr(CSR + 4 * u + r), vr(CSR + 4 * u + r), be)
                a.v('v_fma_f32', vr(ACC + 4 * u + r), vr(ACC + 4 * u + r), al, '-' + vr(CSR + 4 * u + r))
            for h in range(2):
                self.gelu_pair(vr(PK + 2 * u + h), vr(ACC + 4 * u + 2 * h), vr(ACC + 4 * u + 2 * h + 1), vr(T + 6), vr(T + 7), None)
            last = a.bs('buffer_store_dwordx2', vr(PK + 2 * u, 2), vFO, sr(SRD_O, 4), 's69', 512 * u, 'sc1')
        self.CST = Gen.CST
        if post_store:
            post_store()
        return last

    def stage1(self, post_q=None, post_store=None):
        a = self.a
        T = self.V_T
        vA = 164
        self.V_B = 108
        ns = 10
        QB = 106496
        SC = 155648
        self.tile128_ids()
        a.s('s_mov_b32', 's61', '0x3f803f80')
        a.s('s_xor_b32', 's76', 's65', 1)
        self.srd(SRD_A, P_X, 0, ACT)
        self.srd(SRD_B, P_WQKV, 0, D * 3840)
        a.s('s_mul_i32', 's67', 's65', 80)
        a.s('s_add_u32', 's67', 's67', 1280)
        self.dma_patterns(self.V_PAT, 10, 3840, ('kv', 's67'), T)
        VQP = 244
        a.s('s_mul_i32', 's67', 's76', 80)
        self.dma_patterns(VQP, 6, 3840, ('q', 's67'), T)
        a.s('s_lshl_b32', 's66', 's64', 3)
        a.s('s_lshl_b32', 's56', sRG, 1)
        a.s('s_add_u32', 's66', 's66', 's56')
        a.s('s_add_u32', 's74', 's66', sKH)
        a.s('s_xor_b32', 's56', sKH, 1)
        a.s('s_add_u32', 's75', 's66', 's56')
        a.v('v_mul_u32_u24', vr(T), 1280, vN)
        a.v('v_lshl_add_u32', vr(T), vG, 4, vr(T))
        a.s('s_lshl_b32', 's56', sKH, 7)
        a.s('s_mul_i32', 's68', 's74', 20480)
        a.s('s_add_u32', 's68', 's68', 's56')
        a.s('s_mul_i32', 's69', 's75', 20480)
        a.s('s_add_u32', 's69', 's69', 's56')
        dm = []
        plan = [(0, 2, 0, 3), (2, 4, 3, 5), (4, 6, 5, 8), (6, 8, 8, 10), (8, 10, 10, 13)]
        syncs = {}
        for (i0, i1, u0, u1) in plan:
            for i in range(i0, i1):
                off = (i >> 1) * 256 + (i & 1) * 64
                a.bl('buffer_load_dwordx4', vr(vA + 4 * i, 4), vr(T), sr(SRD_A, 4), 's68', off)
                a.bl('buffer_load_dwordx4', vr(vA + 40 + 4 * i, 4), vr(T), sr(SRD_A, 4), 's69', off)
            r = self.dma_issue(self.V_PAT, 10, 3840, 0, u0, u1)
            syncs[i0] = r[-1]
        qd = self.dma_issue(VQP, 6, 3840, QB, 0, 6)
        self.get_nonce()
        self.tr_bases(self.V_TB, 160, 2 * 5120, False, T)
        for q in range(8):
            a.v('v_mov_b32', vr(self.V_ST + q), 0)
        for u in range(8):
            a.v('v_mov_b32', vr(self.V_CS + u), 0)
        koffs = [(4 * (i >> 1) + (i & 1)) * 5120 for i in range(ns)]
        self.gemm_loop(2, 5, koffs, vA, self.V_ACC, self.V_B, self.V_TB, False, [False] * 5, syncs=syncs,
                       stats=self.V_ST, cs=self.V_CS)
        ACC = self.V_ACC
        st_ = self.V_ST
        for r in range(2):
            a.v('v_add_f32', vr(st_ + 4 * r), vr(st_ + 4 * r), vr(st_ + 4 * r + 1))
            a.v('v_add_f32', vr(st_ + 4 * r + 1), vr(st_ + 4 * r + 2), vr(st_ + 4 * r + 3))
            self.greduce(vr(st_ + 4 * r), vr(T + 2))
            self.greduce(vr(st_ + 4 * r + 1), vr(T + 2))
        self.CST = SC
        a.wait_lgkm0()
        self.colsum_reduce(5, self.V_CS)
        QB2 = 65536
        qd2 = self.dma_issue(VQP, 6, 3840, QB2, 0, 2, row0=512)
        a.s('s_lshl_b32', 's56', sW, 13)
        a.v('v_lshl_add_u32', vr(T), vL, 4, 's56')
        a.s('s_xor_b32', 's57', 's56', 4 << 13)
        a.v('v_lshl_add_u32', vr(T + 1), vL, 4, 's57')
        a.dsw('ds_write_b64', vr(T), vr(st_ + 4, 2), 5120)
        for u in range(5):
            a.dsw('ds_write_b128', vr(T), vr(ACC + 20 + 4 * u, 4), 1024 * u)
        a.wait_lgkm0()
        a.barrier()
        X = self.V_B
        for u in range(5):
            a.dsr('ds_read_b128', vr(X + 4 * u, 4), vr(T + 1), 1024 * u)
        a.dsr('ds_read_b64', vr(X + 20, 2), vr(T + 1), 5120)
        a.v('v_lshlrev_b32', vr(T + 3), 2, vN)
        a.v('v_add_u32', vr(T + 3), SC + 4096, vr(T + 3))
        for u in range(5):
            a.dsr('ds_read_b32', vr(X + 24 + u), vr(T + 3), 64 * u)
        a.v('v_add_f32', vr(st_), vr(st_), vr(X + 20))
        a.v('v_add_f32', vr(st_ + 1), vr(st_ + 1), vr(X + 21))
        AL, BE = 'v240', 'v241'
        AL, BE = 'v248', 'v249'
        self.ln_finalize(vr(st_), vr(st_ + 1), AL, BE, vr(T + 6), vr(T + 7), vr(T + 8), False)
        a.s('s_lshl_b32', 's56', sW, 13)
        a.v('v_lshl_add_u32', vr(T + 4), vN, 2, 's56')
        a.dsw('ds_write_b32', vr(T + 4), AL, 6144)
        a.dsw('ds_write_b32', vr(T + 4), BE, 6144 + 64)
        a.v('v_lshl_add_u32', vr(T + 4), vG, 4, 's56')
        a.wait_lgkm0()
        a.dsr('ds_read_b128', vr(X + 32, 4), vr(T + 4), 6144)
        a.dsr('ds_read_b128', vr(X + 36, 4), vr(T + 4), 6144 + 64)
        a.v('v_cmp_gt_u32', 's[70:71]', 8, vN)
        PK = X + 40
        for u in range(5):
            for r in range(4):
                y = vr(ACC + 4 * u + r)
                a.v('v_add_f32', y, y, vr(X + 4 * u + r))
                a.v('v_mul_f32', vr(T + 6), vr(X + 24 + u), vr(X + 36 + r))
                a.v('v_fma_f32', y, y, vr(X + 32 + r), '-' + vr(T + 6))
            for h in range(2):
                y0, y1 = vr(ACC + 4 * u + 2 * h), vr(ACC + 4 * u + 2 * h + 1)
                if u <= 2:
                    self.bf16r2(y0, y1, y0, y1, vr(T + 6))
                    self.phi_pair(vr(T + 8), vr(T + 9), y0, y1, vr(T + 6), vr(T + 7))
                    if u == 2:
                        a.v('v_cndmask_b32', y0, y0, vr(T + 8), 's[70:71]')
                        a.v('v_cndmask_b32', y1, y1, vr(T + 9), 's[70:71]')
                        a.v('v_cvt_pk_bf16_f32', vr(PK + 2 * u + h), y0, y1)
                    else:
                        a.v('v_cvt_pk_bf16_f32', vr(PK + 2 * u + h), vr(T + 8), vr(T + 9))
                else:
                    a.v('v_cvt_pk_bf16_f32', vr(PK + 2 * u + h), y0, y1)
        ONE = vr(T + 10, 2)
        a.v('v_mov_b32', vr(T + 10), 's61')
        a.v('v_mov_b32', vr(T + 11), 's61')
        pairs = [(0, 2), (0, 3), (1, 2), (1, 3), (1, 4), (2, 3), (2, 4), (0, 'z'), (1, 'z'), (2, 'z')]
        KV = ACC
        for idx, (kt, vt) in enumerate(pairs):
            Bop = ONE if vt == 'z' else vr(PK + 2 * vt, 2)
            a.mfma(vr(KV + 4 * idx, 4), vr(PK + 2 * kt, 2), Bop, '0', shape='16x16x16')
        a.wait_lgkm0()
        a.barrier()
        a.s('s_lshl_b32', 's56', sW, 13)
        for idx, (kt, vt) in enumerate(pairs):
            kc, ad, t2 = vr(T + 4), vr(T + 5), vr(T + 6)
            a.v('v_lshl_add_u32', kc, vG, 2, kt * 16)
            a.v('v_cmp_lt_u32', 'vcc', 19, kc)
            a.v('v_cndmask_b32', vr(T + 7), 0, 1, 'vcc')
            a.v('v_mul_u32_u24', t2, 20, vr(T + 7))
            a.v('v_sub_u32', ad, kc, t2)
            if vt == 'z':
                a.v('v_mov_b32', vr(T + 8), 20)
                a.v('v_cmp_eq_u32', 's[72:73]', 0, vN)
            else:
                a.v('v_add_u32', vr(T + 8), vt * 16 - 40, vN)
                a.v('v_sub_u32', vr(T + 8), vr(T + 8), t2)
                a.v('v_cmp_gt_u32', 's[72:73]', 20, vr(T + 8))
            a.v('v_cmp_gt_u32', 'vcc', 40, kc)
            a.s('s_and_b64', 's[72:73]', 's[72:73]', 'vcc')
            a.v('v_mul_u32_u24', vr(T + 7), 420, vr(T + 7))
            a.v('v_mad_u32_u24', vr(T + 8), vr(T + 8), 20, vr(T + 7))
            a.v('v_add_u32', ad, ad, vr(T + 8))
            a.v('v_lshl_add_u32', ad, ad, 2, 's56')
            a.s('s_mov_b64', 's[58:59]', 'exec')
            a.s('s_mov_b64', 'exec', 's[72:73]')
            a.dsw('ds_write_b128', ad, vr(KV + 4 * idx, 4), 0)
            a.s('s_mov_b64', 'exec', 's[58:59]')
        a.wait_lgkm0()
        a.barrier()
        self.srd(SRD_O, P_WS, KVP_OFF, 256 * KVP_BLK)
        a.v('v_lshlrev_b32', vr(T), 4, vTID)
        a.v('v_cmp_gt_u32', 'vcc', 210, vTID)
        a.v('v_bfrev_b32', vr(T + 1), 1)
        a.v('v_cndmask_b32', vr(T + 1), vr(T + 1), vr(T), 'vcc')
        a.v('v_min_u32', vr(T), 4096, vr(T))
        for w in range(8):
            a.dsr('ds_read_b128', vr(X + 4 * w, 4), vr(T), 8192 * w)
        for w in range(1, 8):
            for r in range(4):
                a.v('v_add_f32', vr(X + r), vr(X + r), vr(X + 4 * w + r))
        a.s('s_lshl_b32', 's56', 's65', 4)
        a.s('s_add_u32', 's77', 's56', 's64')
        a.s('s_mul_i32', 's56', 's77', KVP_BLK)
        stp = a.bs('buffer_store_dwordx4', vr(X, 4), vr(T + 1), sr(SRD_O, 4), 's56', 0, 'sc1')
        self.read_nonce()
        self.signal(0, 's77', stp)
        a.wait_vm(qd2[-1])
        a.barrier()
        self.tr_bases(self.V_TB, 96, 2 * 3072, False, T)
        for u in range(3):
            a.v('v_mov_b32', vr(self.V_CS + u), 0)
        koffs = []
        for i in range(ns):
            j = 4 * (i >> 1) + (i & 1)
            koffs.append(QB + j * 3072 if j < 16 else QB2 + (j - 16) * 3072)
        order = [8, 9, 0, 1, 2, 3, 4, 5, 6, 7]
        self.gemm_loop_ord(2, 3, koffs, order, vA, ACC, self.V_B, self.V_TB, cs=self.V_CS)
        a.wait_lgkm0()
        self.colsum_reduce(3, self.V_CS)
        if post_q:
            post_q()
        XQ = self.XQ
        a.s('s_lshl_b32', 's56', sW, 12)
        a.s('s_xor_b32', 's57', 's56', 4 << 12)
        a.s('s_add_u32', 's56', 's56', XQ)
        a.s('s_add_u32', 's57', 's57', XQ)
        a.v('v_lshl_add_u32', vr(T), vL, 4, 's56')
        a.v('v_lshl_add_u32', vr(T + 1), vL, 4, 's57')
        for u in range(3):
            a.dsw('ds_write_b128', vr(T), vr(ACC + 12 + 4 * u, 4), 1024 * u)
        a.s('s_lshl_b32', 's78', 's76', 4)
        a.wait_lgkm0()
        self.wait_flags(0, 's78', 16)
        a.v('v_lshlrev_b32', vr(T + 2), 4, vTID)
        a.v('v_cmp_gt_u32', 'vcc', 210, vTID)
        a.v('v_bfrev_b32', vr(T + 3), 1)
        a.v('v_cndmask_b32', vr(T + 3), vr(T + 3), vr(T + 2), 'vcc')
        a.s('s_mul_i32', 's56', 's78', KVP_BLK)
        PB = vA
        for p in range(16):
            a.bl('buffer_load_dwordx4', vr(PB + 4 * p, 4), vr(T + 3), sr(SRD_O, 4), 's56', 0, 'sc1')
            if p < 15:
                a.s('s_add_u32', 's56', 's56', KVP_BLK)
        for u in range(3):
            a.dsr('ds_read_b128', vr(X + 4 * u, 4), vr(T + 1), 1024 * u)
        a.v('v_lshlrev_b32', vr(T + 4), 4, vG)
        a.v('v_add_u32', vr(T + 4), SC + 4096, vr(T + 4))
        for u in range(3):
            a.dsr('ds_read_b128', vr(X + 12 + 4 * u, 4), vr(T + 4), 64 * u)
        PQ = X + 40
        for u in range(3):
            for r in range(4):
                y = vr(ACC + 4 * u + r)
                a.v('v_add_f32', y, y, vr(X + 4 * u + r))
                a.v('v_mul_f32', vr(T + 6), vr(X + 12 + 4 * u + r), BE)
                a.v('v_fma_f32', y, y, AL, '-' + vr(T + 6))
            for h in range(2):
                y0, y1 = vr(ACC + 4 * u + 2 * h), vr(ACC + 4 * u + 2 * h + 1)
                self.bf16r2(y0, y1, y0, y1, vr(T + 6))
                self.phi_pair(vr(T + 8), vr(T + 9), y0, y1, vr(T + 6), vr(T + 7))
                a.v('v_cvt_pk_bf16_f32', vr(PQ + 2 * u + h), vr(T + 8), vr(T + 9))
        KT = XQ + 32768
        KZ = KT + 2 * 21 * 48
        for p in range(1, 16):
            for r in range(4):
                a.v('v_add_f32', vr(PB + r), vr(PB + r), vr(PB + 4 * p + r))
        a.v('v_cvt_pk_bf16_f32', vr(PB), vr(PB), vr(PB + 1))
        a.v('v_cvt_pk_bf16_f32', vr(PB + 1), vr(PB + 2), vr(PB + 3))
        a.v('v_mul_u32_u24', vr(T + 4), 13108, vTID)
        a.v('v_lshrrev_b32', vr(T + 4), 16, vr(T + 4))
        for t in range(512):
            assert (t * 13108) >> 16 == t // 5
        a.v('v_mul_u32_u24', vr(T + 5), 5, vr(T + 4))
        a.v('v_sub_u32', vr(T + 5), vTID, vr(T + 5))
        a.v('v_mul_u32_u24', vr(T + 4), 48, vr(T + 4))
        a.v('v_lshl_add_u32', vr(T + 4), vr(T + 5), 3, vr(T + 4))
        a.v('v_mov_b32', vr(T + 5), KZ - KT)
        a.v('v_cmp_gt_u32', 'vcc', 210, vTID)
        a.v('v_cndmask_b32', vr(T + 4), vr(T + 5), vr(T + 4), 'vcc')
        a.v('v_add_u32', vr(T + 4), KT, vr(T + 4))
        a.dsw('ds_write_b64', vr(T + 4), vr(PB, 2), 0)
        a.wait_lgkm0()
        a.barrier()
        FR = PB + 8
        zt = vr(T + 5)
        a.v('v_mov_b32', zt, KZ)
        for hd in range(2):
            for hf in range(2):
                d0 = {(0, 0): 0, (0, 1): 16, (1, 0): -4, (1, 1): 12}[(hd, hf)]
                if (hd, hf) == (0, 0):
                    msk = None
                elif (hd, hf) == (0, 1):
                    a.v('v_cmp_eq_u32', 's[72:73]', 0, vG); msk = 's[72:73]'
                elif (hd, hf) == (1, 0):
                    a.v('v_cmp_le_u32', 's[72:73]', 1, vG); msk = 's[72:73]'
                else:
                    a.v('v_cmp_ge_u32', 's[72:73]', 1, vG); msk = 's[72:73]'
                for fi in range(3):
                    ad = vr(T + 6)
                    if fi == 0:
                        a.v('v_mul_u32_u24', ad, 48, vN)
                    elif fi == 1:
                        a.v('v_min_u32', ad, 4, vN)
                        a.v('v_mul_u32_u24', ad, 48, ad)
                        a.v('v_add_u32', ad, 16 * 48, ad)
                    else:
                        a.v('v_mov_b32', ad, 20 * 48)
                    a.v('v_lshl_add_u32', ad, vG, 3, ad)
                    a.v('v_add_u32', ad, KT + hd * 21 * 48 + d0 * 2, ad)
                    if msk:
                        a.v('v_cndmask_b32', ad, zt, ad, msk)
                    a.dsr('ds_read_b64', vr(FR + (hd * 3 + fi) * 4 + 2 * hf, 2), ad, 0)
        NUM = ACC
        for hd in range(2):
            Bop = vr(PQ + 2 * hd, 4)
            for fi in range(3):
                a.mfma(vr(NUM + (hd * 3 + fi) * 4, 4), vr(FR + (hd * 3 + fi) * 4, 4), Bop, '0')
        self.srd(SRD_E2, P_WS, O_OFF, ACT)
        last = None
        for hd in range(2):
            den = vr(NUM + (hd * 3 + 2) * 4)
            self.bf16r(den, den)
            a.v('v_add_f32', den, f32(1e-6), den)
            self.bf16r(den, den)
            a.v('v_rcp_f32', den, den)
            for fi in range(2):
                b = NUM + (hd * 3 + fi) * 4
                for h in range(2):
                    y0, y1 = vr(b + 2 * h), vr(b + 2 * h + 1)
                    self.bf16r2(y0, y1, y0, y1, vr(T + 6))
                    a.v('v_mul_f32', y0, y0, den)
                    a.v('v_mul_f32', y1, y1, den)
                    a.v('v_cvt_pk_bf16_f32', vr(T + 8 + h), y0, y1)
                a.s('s_mul_i32', 's56', 's76', 40)
                a.s('s_add_u32', 's56', 's56', hd * 20 + 16 * fi)
                col = vr(T + 4)
                a.v('v_lshl_add_u32', col, vG, 2, 's56')
                a.v('v_lshrrev_b32', vr(T + 5), 3, col)
                a.v('v_lshlrev_b32', vr(T + 5), 8, vr(T + 5))
                a.v('v_lshl_add_u32', vr(T + 5), vN, 4, vr(T + 5))
                a.v('v_bfe_u32', col, col, 2, 1)
                a.v('v_lshl_add_u32', vr(T + 5), col, 3, vr(T + 5))
                if fi == 1:
                    a.v('v_cmp_eq_u32', 'vcc', 0, vG)
                    a.v('v_bfrev_b32', col, 1)
                    a.v('v_cndmask_b32', vr(T + 5), col, vr(T + 5), 'vcc')
                a.s('s_mul_i32', 's57', 's74', 20480)
                last = a.bs('buffer_store_dwordx2', vr(T + 8, 2), vr(T + 5), sr(SRD_E2, 4), 's57', 0, 'sc1')
        self.CST = Gen.CST
        if post_store:
            post_store()
        return last

    XQ = 110592

    def phi_pair(self, d0, d1, y0, y1, t0, t1):
        a = self.a
        for y, t in ((y0, t0), (y1, t1)):
            a.v('v_mul_f32', t, f32(math.log2(math.e)), y)
        for y, t in ((y0, t0), (y1, t1)):
            a.v('v_exp_f32', t, t)
        for y, t, d in ((y0, t0, d0), (y1, t1, d1)):
            a.v('v_add_f32', d, 1.0, y)
            a.v('v_cmp_lt_f32', 'vcc', 0, y)
            a.v('v_cndmask_b32', d, t, d, 'vcc')
        self.bf16r2(d0, d1, d0, d1, t0)
        a.v('v_add_f32', d0, f32(1e-6), d0)
        a.v('v_add_f32', d1, f32(1e-6), d1)
        self.bf16r2(d0, d1, d0, d1, t0)

    def gemm_loop_ord(self, nrt, nct, koffs, order, vA, vACC, vB, vTB, cs=None):
        a = self.a
        ns = len(koffs)
        nb = nct * 4
        bump = [0]

        def reads(p):
            i = order[p]
            buf = vB + (p & 1) * nb
            for u in range(nct):
                off = koffs[i] + 32 * u - bump[0]
                if off + 64 > 65535:
                    inc = koffs[i] - bump[0]
                    for b in range(2):
                        a.v('v_add_u32', vr(vTB + b), inc, vr(vTB + b))
                    bump[0] += inc
                    off = koffs[i] + 32 * u - bump[0]
                a.dsr('ds_read_b64_tr_b16', vr(buf + 4 * u, 2), vr(vTB), off)
                a.dsr('ds_read_b64_tr_b16', vr(buf + 4 * u + 2, 2), vr(vTB + 1), off)

        reads(0)
        for p in range(ns):
            i = order[p]
            if p + 1 < ns:
                reads(p + 1)
            buf = vB + (p & 1) * nb
            for u in range(nct):
                for r in range(nrt):
                    acc = vr(vACC + (r * nct + u) * 4, 4)
                    a.mfma(acc, vr(buf + 4 * u, 4), vr(vA + (r * ns + i) * 4, 4), '0' if p == 0 else acc)
            if cs is not None:
                lab = a.label()
                a.s('s_cmp_lg_u32', sRG, p & 3)
                a.branch('s_cbranch_scc1', lab)
                a.begin_cond()
                for q in range(4):
                    for u in range(nct):
                        a.v('v_dot2c_f32_bf16', vr(cs + u), 's61', vr(buf + 4 * u + q))
                a.end_cond()
                a.place(lab)

    def kernel_text(self, label, body):
        self.a = Asm()
        Gen._kn = getattr(Gen, '_kn', 0) + 1
        self.a._lab = Gen._kn * 10000
        end = f'L_end_{label}'
        self.prologue(end)
        body()
        self.a.place(end)
        self.a.raw('s_endpgm')
        txt = f'.globl {label}\n.p2align 8\n.type {label},@function\n{label}:\n' + self.a.text()
        return txt

    def build_multi(self):
        ks = []

        def k1():
            self.stage1()

        def k64(st):
            def f():
                self.b64_setup()
                b = self.b64_issue(st)
                self.stage64(st, b)
            return f

        def k5():
            self.b5_setup()
            b = self.b5_issue()
            self.stage5(b)
        ks = [('s1_kernel', k1), ('s2_kernel', k64(2)), ('s3_kernel', k64(3)), ('s4_kernel', k64(4)), ('s5_kernel', k5), ('s6_kernel', k64(6))]
        return ks


HEADER = open('cdna_kernels/' + NAME + '.s.ref').read().split('; Override launch geometry')[0]


def descriptor(label):
    return f""".section .rodata,"a"
.p2align 6
.amdhsa_kernel {label}
  .amdhsa_next_free_vgpr 256
  .amdhsa_next_free_sgpr 96
  .amdhsa_accum_offset 256
  .amdhsa_group_segment_fixed_size 0
  .amdhsa_kernarg_size 88
  .amdhsa_user_sgpr_count 2
  .amdhsa_user_sgpr_kernarg_segment_ptr 1
  .amdhsa_system_sgpr_workgroup_id_x 1
.end_amdhsa_kernel
"""


def main():
    mode = sys.argv[1] if len(sys.argv) > 1 else 'multi'
    out = sys.argv[2] if len(sys.argv) > 2 else 'cdna_kernels/' + NAME + '.s'
    g = Gen(mode != 'multi')
    if mode == 'multi':
        ks = g.build_multi()
        hdr = HEADER + ''.join(f'; @launch kernel={k} grid=(256,1,1) block=(512,1,1) lds={LDS_BYTES}\n' for k, _ in ks)
    else:
        ks = g.build_persistent()
        hdr = HEADER + f'; @launch grid=(256,1,1) block=(512,1,1) lds={LDS_BYTES}\n'
    txt = hdr + '.amdgcn_target "amdgcn-amd-amdhsa--gfx950"\n.text\n'
    for k, body in ks:
        txt += g.kernel_text(k, body)
    for k, _ in ks:
        txt += descriptor(k)
    open(out, 'w').write(txt)
    print('wrote', out, len(txt), 'bytes')


if __name__ == '__main__':
    main()
```

```python
import sys, os, struct, math
from asmlib import Asm, vr, sr

NAME = 'sequential_preLN__linear_attn_block__mixer_s_mlp__prompt'

S, D, F = 2048, 640, 1728
ACT = S * D * 2
O_OFF, H_OFF, HH_OFF, X1_OFF = 0, ACT, 2 * ACT, 3 * ACT
G_OFF = 4 * ACT
G_BYTES = S * F * 2
KVP_OFF = 0x1100000
KVP_BLK = 3456
ST_OFF = 0x1200000
FLG_OFF = 0x1210000
FLG_BYTES = 8 * 4096
LDS_BYTES = 163840


def f32(x):
    return '0x%08x' % struct.unpack('<I', struct.pack('<f', x))[0]


sXCD, sI, sW, sRG, sKH = 's4', 's5', 's6', 's7', 's28'
SRD_A, SRD_B, SRD_O, SRD_R, SRD_F = 8, 12, 16, 20, 24
P_X, P_WQKV, P_WO, P_W1, P_W2, P_W3, P_W4, P_OUT, P_DBG, P_WS = 32, 34, 36, 40, 42, 44, 46, 48, 50, 52
sNON = 54
SRD_E, SRD_E2 = 80, 84
vTID, vL, vN, vG = 'v0', 'v1', 'v2', 'v3'


class Gen:
    def __init__(self, persistent):
        self.persistent = persistent
        self.a = None

    def srd(self, d, ptr, off, nbytes):
        a = self.a
        if off:
            a.s('s_add_u32', sr(d), sr(ptr), off)
            a.s('s_addc_u32', sr(d + 1), sr(ptr + 1), 0)
        else:
            a.s('s_mov_b32', sr(d), sr(ptr))
            a.s('s_mov_b32', sr(d + 1), sr(ptr + 1))
        a.s('s_mov_b32', sr(d + 2), nbytes)
        a.s('s_mov_b32', sr(d + 3), '0x00020000')

    def prologue(self, endlab):
        a = self.a
        a.s('s_cmp_ge_u32', 's2', 256)
        a.branch('s_cbranch_scc1', endlab)
        a.smem('s_load_dwordx4', 's[32:35]', 's[0:1]', 0)
        a.smem('s_load_dwordx2', 's[36:37]', 's[0:1]', 16)
        a.smem('s_load_dwordx8', 's[40:47]', 's[0:1]', 32)
        a.smem('s_load_dwordx4', 's[48:51]', 's[0:1]', 64)
        a.smem('s_load_dwordx2', 's[52:53]', 's[0:1]', 80)
        a.v('v_and_b32', vL, 63, vTID)
        a.v('v_lshrrev_b32', 'v4', 6, vTID)
        a.v('v_and_b32', vN, 15, vTID)
        a.v('v_bfe_u32', vG, vTID, 4, 2)
        a.v('v_readfirstlane_b32', sW, 'v4')
        a.s('s_and_b32', sXCD, 's2', 7)
        a.s('s_lshr_b32', sI, 's2', 3)
        a.s('s_and_b32', sRG, sW, 3)
        a.s('s_lshr_b32', sKH, sW, 2)
        a.wait_lgkm0()
        self.srd(SRD_F, P_WS, FLG_OFF, FLG_BYTES)

    def bf16r(self, dst, src, tmp=None):
        a = self.a
        a.v('v_cvt_pk_bf16_f32', dst, src, src)
        a.v('v_lshlrev_b32', dst, 16, dst)

    def bf16r2(self, d0, d1, s0, s1, tmp):
        a = self.a
        a.v('v_cvt_pk_bf16_f32', tmp, s0, s1)
        a.v('v_lshlrev_b32', d0, 16, tmp)
        a.v('v_and_b32', d1, '0xffff0000', tmp)

    def dma_patterns(self, vbase, cpr, ldb, colmap, tmp):
        a = self.a
        U = cpr // 2
        M = (65536 + cpr - 1) // cpr
        for q in range(512 * U):
            assert (q * M) >> 16 == q // cpr
        t0, t1, t2 = vr(tmp), vr(tmp + 1), vr(tmp + 2)
        a.s('s_mov_b32', 's56', ldb)
        for u in range(U):
            d = vr(vbase + u)
            a.v('v_add_u32', t0, 512 * u, vTID)
            a.v('v_mul_u32_u24', t1, M, t0)
            a.v('v_lshrrev_b32', t1, 16, t1)
            a.v('v_mul_u32_u24', t2, cpr, t1)
            a.v('v_sub_u32', t0, t0, t2)
            a.v('v_bfe_u32', t2, t1, 3, 1)
            a.v('v_lshlrev_b32', t2, 2, t2)
            a.v('v_xor_b32', t1, t1, t2)
            a.v('v_mul_lo_u32', d, t1, 's56')
            a.v('v_lshl_add_u32', d, t0, 4, d)
            a.v('v_add_u32', d, colmap[1], d)
            if colmap[0] == 'kv':
                a.v('v_cmp_lt_u32', 'vcc', 4, t0)
                a.v('v_add_u32', t1, 1280 - 80, d)
                a.v('v_cndmask_b32', d, d, t1, 'vcc')
            elif colmap[0] == 'q':
                a.v('v_cmp_lt_u32', 'vcc', 4, t0)
                a.v('v_bfrev_b32', t1, 1)
                a.v('v_cndmask_b32', d, d, t1, 'vcc')

    def dma_issue(self, vpat, cpr, ldb, lds_base, u0, u1, srd=SRD_B, row0=0):
        a = self.a
        U = cpr // 2
        res = []
        a.s('s_lshl_b32', 's57', sW, 10)
        for u in range(u0, u1):
            a.s('s_add_u32', 'm0', 's57', lds_base + u * 8192)
            so = (row0 + (u // U) * 256) * ldb
            if so:
                a.s('s_mov_b32', 's58', so)
            res.append(a.dma(vr(vpat + u % U), sr(srd, 4), 's58' if so else '0'))
        return res

    def tr_bases(self, vb, P, kh_bytes, rot, tmp):
        a = self.a
        t0, t1 = vr(tmp), vr(tmp + 1)
        a.v('v_bfe_u32', t0, vTID, 2, 2)
        a.v('v_bfe_u32', t1, vTID, 4, 1)
        a.v('v_lshl_or_b32', t0, t1, 2, t0)
        a.v('v_lshl_or_b32', t1, vG, 3, t0)
        a.v('v_mul_u32_u24', vr(vb), P, t1)
        a.v('v_xor_b32', t1, 4, t1)
        a.v('v_mul_u32_u24', vr(vb + 1), P, t1)
        a.v('v_and_b32', t0, 3, vTID)
        a.v('v_lshlrev_b32', t0, 3, t0)
        a.s('s_mul_i32', 's56', sKH, kh_bytes)
        if rot:
            a.s('s_mul_i32', 's59', sKH, 96)
            a.s('s_add_u32', 's59', 's59', 's56')
            a.s('s_mul_i32', 's60', sKH, 64)
            a.s('s_sub_u32', 's60', 's56', 's60')
            a.v('v_add3_u32', vr(vb + 2), vr(vb), t0, 's60')
            a.v('v_add3_u32', vr(vb + 3), vr(vb + 1), t0, 's60')
            a.v('v_add3_u32', vr(vb), vr(vb), t0, 's59')
            a.v('v_add3_u32', vr(vb + 1), vr(vb + 1), t0, 's59')
        else:
            a.v('v_add3_u32', vr(vb), vr(vb), t0, 's56')
            a.v('v_add3_u32', vr(vb + 1), vr(vb + 1), t0, 's56')

    def gemm_loop(self, nrt, nct, koffs, vA, vACC, vB, vTB, rot, orient, syncs=None, stats=None, cs=None, acc_init=True,
                  hook=None):
        a = self.a
        ns = len(koffs)
        nb = nct * 4
        bump = [0]
        nbase = 4 if rot else 2

        def reads(i):
            if syncs and i in syncs:
                a.wait_vm(syncs[i])
                a.barrier()
            buf = vB + (i & 1) * nb
            for u in range(nct):
                off = koffs[i] + 32 * u - bump[0]
                if off + 64 > 65535:
                    inc = koffs[i] - bump[0]
                    for b in range(nbase):
                        a.v('v_add_u32', vr(vTB + b), inc, vr(vTB + b))
                    bump[0] += inc
                    off = koffs[i] + 32 * u - bump[0]
                bsel = 2 if (rot and u >= 2) else 0
                a.dsr('ds_read_b64_tr_b16', vr(buf + 4 * u, 2), vr(vTB + bsel), off)
                a.dsr('ds_read_b64_tr_b16', vr(buf + 4 * u + 2, 2), vr(vTB + bsel + 1), off)

        reads(0)
        for i in range(ns):
            if i + 1 < ns:
                reads(i + 1)
            buf = vB + (i & 1) * nb
            for u in range(nct):
                for r in range(nrt):
                    acc = vr(vACC + (r * nct + u) * 4, 4)
                    A = vr(vA + (r * ns + i) * 4, 4)
                    B = vr(buf + 4 * u, 4)
                    c = '0' if (i == 0 and acc_init) else acc
                    if orient[u]:
                        a.mfma(acc, B, A, c)
                    else:
                        a.mfma(acc, A, B, c)
            if stats is not None:
                for r in range(nrt):
                    for q in range(4):
                        x = vr(vA + (r * ns + i) * 4 + q)
                        a.v('v_dot2c_f32_bf16', vr(stats + r * 4 + (q & 1)), 's61', x)
                        a.v('v_dot2c_f32_bf16', vr(stats + r * 4 + 2 + (q & 1)), x, x)
            if cs is not None:
                lab = a.label()
                a.s('s_cmp_lg_u32', sRG, i & 3)
                a.branch('s_cbranch_scc1', lab)
                a.begin_cond()
                for q in range(4):
                    for u in range(nct):
                        a.v('v_dot2c_f32_bf16', vr(cs + u), 's61', vr(buf + 4 * u + q))
                a.end_cond()
                a.place(lab)
            if hook:
                hook(i)
        return bump[0]

    def greduce(self, v, tmp):
        a = self.a
        a.v('v_mov_b32', tmp, v)
        a.v('v_permlane32_swap_b32', tmp, v)
        a.v('v_add_f32', v, v, tmp)
        a.v('v_mov_b32', tmp, v)
        a.v('v_permlane16_swap_b32', tmp, v)
        a.v('v_add_f32', v, v, tmp)

    def ln_finalize(self, vs, vq, al, be, t0, t1, t2, double, st_m=None, st_r=None):
        a = self.a
        a.v('v_mul_f32', t0, f32(1.0 / D), vs)
        a.v('v_mul_f32', t1, f32(1.0 / D), vq)
        a.v('v_fma_f32', t1, '-' + t0, t0, t1)
        a.v('v_max_f32', t1, 0, t1)
        self.bf16r(be, t0)
        self.bf16r(t2, t1)
        a.v('v_add_f32', t2, f32(1e-5), t2)
        self.bf16r(t2, t2)
        a.v('v_sqrt_f32', t2, t2)
        self.bf16r(t2, t2)
        a.v('v_rcp_f32', al, t2)
        if st_m is not None:
            a.v('v_mov_b32', st_m, be)
            a.v('v_mov_b32', st_r, al)
        if not double:
            a.v('v_mul_f32', be, be, al)
        else:
            a.v('v_sub_f32', t0, t0, be)
            a.v('v_mul_f32', t0, t0, al)
            self.bf16r(t0, t0)
            a.v('v_mul_f32', t1, t1, al)
            a.v('v_mul_f32', t1, t1, al)
            self.bf16r(t1, t1)
            a.v('v_add_f32', t1, f32(1e-5), t1)
            self.bf16r(t1, t1)
            a.v('v_sqrt_f32', t1, t1)
            self.bf16r(t1, t1)
            a.v('v_rcp_f32', t1, t1)
            a.v('v_fma_f32', be, be, al, t0)
            a.v('v_mul_f32', be, be, t1)
            a.v('v_mul_f32', al, al, t1)

    def gelu_pair(self, dst, y0, y1, t0, t1, t2):
        a = self.a
        c0 = -2.0 * math.log2(math.e) * math.sqrt(2.0 / math.pi)
        c1 = c0 * 0.044715
        self.bf16r2(y0, y1, y0, y1, t0)
        for y, t in ((y0, t0), (y1, t1)):
            a.v('v_mul_f32', t, y, y)
            a.v('v_fma_f32', t, t, 's62', 's63') if False else None
        for y, t in ((y0, t0), (y1, t1)):
            a.v('v_fmaak_f32', t, t, 'v5', f32(c0)) if False else a.v('v_fma_f32', t, t, 'v5', 'v6')
        for y, t in ((y0, t0), (y1, t1)):
            a.v('v_mul_f32', t, t, y)
        for y, t in ((y0, t0), (y1, t1)):
            a.v('v_exp_f32', t, t)
        for y, t in ((y0, t0), (y1, t1)):
            a.v('v_add_f32', t, 1.0, t)
        for y, t in ((y0, t0), (y1, t1)):
            a.v('v_rcp_f32', t, t)
        for y, t in ((y0, t0), (y1, t1)):
            a.v('v_mul_f32', y, y, t)
        a.v('v_cvt_pk_bf16_f32', dst, y0, y1)

    def gelu_consts(self):
        a = self.a
        c0 = -2.0 * math.log2(math.e) * math.sqrt(2.0 / math.pi)
        a.v('v_mov_b32', 'v5', f32(c0 * 0.044715))
        a.v('v_mov_b32', 'v6', f32(c0))

    def get_nonce(self):
        a = self.a
        self.srd(SRD_E, P_DBG, 0, 256)
        a.v('v_mov_b32', 'v250', 0)
        lab = a.label()
        a.s('s_or_b32', 's56', 's2', sW)
        a.s('s_cmp_lg_u32', 's56', 0)
        a.branch('s_cbranch_scc1', lab)
        a.begin_cond()
        a.raw('s_memrealtime s[56:57]', 'smem', wr=['s[56:57]'])
        a.wait_lgkm0()
        a.s('s_or_b32', 's56', 's56', 1)
        a.s('s_or_b32', 's57', 's57', '0x40000000')
        a.v('v_mov_b32', 'v252', 's56')
        a.v('v_mov_b32', 'v253', 's57')
        a.s('s_mov_b64', 's[58:59]', 'exec')
        a.s('s_mov_b64', 'exec', 1)
        a.bs('buffer_store_dwordx2', 'v[252:253]', 'v250', sr(SRD_E, 4), flags='sc1')
        a.s('s_mov_b64', 'exec', 's[58:59]')
        a.end_cond()
        a.place(lab)

    def read_nonce(self):
        a = self.a
        loop, done = a.label(), a.label()
        a.v('v_mov_b32', 'v250', 0)
        a.s('s_mov_b32', 's58', 0)
        a.place(loop)
        a.raw(f'buffer_load_dwordx2 v[252:253], v250, {sr(SRD_E, 4)}, 0 offen sc1', 'other')
        a.raw('s_waitcnt vmcnt(0)', 'other')
        a.raw('v_readfirstlane_b32 s54, v252', 'other', wr=['s54'])
        a.raw('v_readfirstlane_b32 s55, v253', 'other', wr=['s55'])
        a.raw('s_add_u32 s58, s58, 1', 'other')
        a.raw('s_nop 4', 'other')
        a.raw('s_cmp_lg_u32 s54, 0', 'other')
        a.raw(f's_cbranch_scc1 {done}', 'other')
        a.raw('s_sleep 2', 'other')
        a.raw('s_cmp_lt_u32 s58, 0x40000', 'other')
        a.raw(f's_cbranch_scc1 {loop}', 'other')
        a.place(done)
        a.wait_vm0()

    def signal(self, stage, sidx, last_store):
        a = self.a
        a.wait_vm(last_store)
        a.barrier()
        lab = a.label()
        a.s('s_cmp_lg_u32', sW, 0)
        a.branch('s_cbranch_scc1', lab)
        a.begin_cond()
        a.s('s_add_u32', 's56', sr(sNON), 2 * stage)
        a.v('v_mov_b32', 'v252', 's56')
        a.v('v_mov_b32', 'v253', sr(sNON + 1))
        a.v('v_mov_b32', 'v250', 0)
        a.s('s_lshl_b32', 's57', sidx, 3)
        a.s('s_add_u32', 's57', 's57', stage * 4096)
        a.s('s_mov_b64', 's[58:59]', 'exec')
        a.s('s_mov_b64', 'exec', 1)
        a.bs('buffer_store_dwordx2', 'v[252:253]', 'v250', sr(SRD_F, 4), 's57', flags='sc1')
        a.s('s_mov_b64', 'exec', 's[58:59]')
        a.end_cond()
        a.place(lab)

    def wait_flags(self, stage, sfirst, n, lo_skip=None, hi_skip=None):
        a = self.a
        lab, loop, done = a.label(), a.label(), a.label()
        a.s('s_cmp_lg_u32', sW, 0)
        a.branch('s_cbranch_scc1', lab)
        a.begin_cond()
        a.s('s_add_u32', 's56', sr(sNON), 2 * stage)
        a.v('v_add_u32', 'v250', sfirst, vL)
        a.v('v_lshlrev_b32', 'v250', 3, 'v250')
        a.v('v_add_u32', 'v250', stage * 4096, 'v250')
        a.s('s_mov_b64', 's[58:59]', 'exec')
        if lo_skip is None:
            a.s('s_mov_b64', 'exec', (1 << n) - 1 if n < 32 else -1)
        else:
            a.v('v_cmp_le_u32', 'vcc', lo_skip, vL)
            a.v('v_cmp_gt_u32', 's[94:95]', hi_skip, vL)
            a.s('s_and_b64', 'exec', 'vcc', 's[94:95]')
        a.s('s_mov_b32', 's57', 0)
        a.place(loop)
        a.raw(f'buffer_load_dwordx2 v[252:253], v250, {sr(SRD_F, 4)}, 0 offen sc1', 'other')
        a.raw('s_waitcnt vmcnt(0)', 'other')
        a.raw('v_cmp_ne_u32 vcc, s56, v252', 'other')
        a.raw(f'v_cmp_ne_u32 s[94:95], {sr(sNON + 1)}, v253', 'other')
        a.raw('s_add_u32 s57, s57, 1', 'other')
        a.raw('s_nop 4', 'other')
        a.raw('s_or_b64 vcc, vcc, s[94:95]', 'other')
        a.raw(f's_cbranch_vccz {done}', 'other')
        a.raw('s_sleep 1', 'other')
        a.raw('s_cmp_lt_u32 s57, 0x40000', 'other')
        a.raw(f's_cbranch_scc1 {loop}', 'other')
        a.place(done)
        a.s('s_mov_b64', 'exec', 's[58:59]')
        a.end_cond()
        a.place(lab)
        a.barrier()

    V_PAT = 8
    V_TB = 16
    V_ST = 20
    V_CS = 28
    V_T = 36
    V_ACC = 52
    V_B = 108
    V_A = 144

    XCH64 = 122880
    CST = 155648

    def tile64_ids(self):
        a = self.a
        a.s('s_lshr_b32', 's88', sI, 3)
        a.s('s_lshl_b32', 's56', sXCD, 2)
        a.s('s_add_u32', 's88', 's88', 's56')
        a.s('s_and_b32', 's89', sI, 7)
        a.s('s_lshl_b32', 's90', 's88', 2)
        a.s('s_add_u32', 's90', 's90', sRG)

    def b64_setup(self):
        a = self.a
        self.tile64_ids()
        a.s('s_mul_i32', 's62', 's89', 160)
        self.dma_patterns(self.V_PAT, 10, 1280, ('lin', 's62'), self.V_CS)

    def colsum_pre(self, nct, P, lds_b, nk, rotv):
        a = self.a
        T = self.V_T
        cs = self.V_CS
        b0, b1 = vr(T + 8), vr(T + 9)
        a.v('v_bfe_u32', vr(T), vTID, 2, 2)
        a.v('v_bfe_u32', vr(T + 1), vTID, 4, 1)
        a.v('v_lshl_or_b32', vr(T), vr(T + 1), 2, vr(T))
        a.v('v_lshl_or_b32', vr(T + 1), vG, 3, vr(T))
        a.v('v_mul_u32_u24', b0, P, vr(T + 1))
        a.v('v_xor_b32', vr(T + 1), 4, vr(T + 1))
        a.v('v_mul_u32_u24', b1, P, vr(T + 1))
        a.v('v_and_b32', vr(T), 3, vTID)
        a.v('v_lshlrev_b32', vr(T), 3, vr(T))
        a.s('s_mul_i32', 's56', sW, 32 * P)
        a.s('s_add_u32', 's56', 's56', lds_b)
        a.v('v_add3_u32', b0, b0, vr(T), 's56')
        a.v('v_add3_u32', b1, b1, vr(T), 's56')
        for u in range(nct):
            a.v('v_mov_b32', vr(cs + u), 0)
        nb = nct * 4
        rounds = (nk + 7) // 8
        for rd in range(rounds):
            lab = None
            if rd * 8 + 8 > nk:
                lab = a.label()
                a.s('s_cmp_ge_u32', sW, nk - rd * 8)
                a.branch('s_cbranch_scc1', lab)
                a.begin_cond()
            if rd:
                a.v('v_add_u32', b0, 8 * 32 * P, b0)
                a.v('v_add_u32', b1, 8 * 32 * P, b1)
            buf = self.V_B + (rd & 1) * nb
            for u in range(nct):
                a.dsr('ds_read_b64_tr_b16', vr(buf + 4 * u, 2), b0, 32 * u)
                a.dsr('ds_read_b64_tr_b16', vr(buf + 4 * u + 2, 2), b1, 32 * u)
            for q in range(4):
                for u in range(nct):
                    a.v('v_dot2c_f32_bf16', vr(cs + u), 's61', vr(buf + 4 * u + q))
            if lab:
                a.end_cond()
                a.place(lab)
        self.colsum_reduce(nct, cs)

    def colsum_reduce(self, nct, cs, rot=False):
        a = self.a
        T = self.V_T
        for u in range(nct):
            self.greduce(vr(cs + u), vr(T))
        a.s('s_lshl_b32', 's56', sW, 9)
        a.s('s_add_u32', 's56', 's56', self.CST)
        a.v('v_lshl_add_u32', vr(T), vN, 2, 's56')
        a.s('s_mov_b64', 's[58:59]', 'exec')
        a.s('s_mov_b64', 'exec', '0xffff')
        for u in range(nct):
            a.dsw('ds_write_b32', vr(T), vr(cs + u), 64 * u)
        a.s('s_mov_b64', 'exec', 's[58:59]')
        a.wait_lgkm0()
        a.barrier()
        lab = a.label()
        a.s('s_cmp_ge_u32', sW, 2)
        a.branch('s_cbranch_scc1', lab)
        a.begin_cond()
        a.v('v_lshlrev_b32', vr(T), 2, vTID)
        a.v('v_add_u32', vr(T), self.CST, vr(T))
        for w in range(8):
            a.dsr('ds_read_b32', vr(T + 1 + w), vr(T), 512 * w)
        for w in range(1, 8):
            a.v('v_add_f32', vr(T + 1), vr(T + 1), vr(T + 1 + w))
        a.dsw('ds_write_b32', vr(T), vr(T + 1), 4096)
        a.wait_lgkm0()
        a.end_cond()
        a.place(lab)
        a.barrier()

    def stage64(self, st, pre_b=None, post_loop=None, post_store=None, pre_a=None):
        a = self.a
        T = self.V_T
        K = F if st == 6 else D
        NJ = K // 32
        ns = NJ // 2
        vA = 128
        self.V_B = 72
        wptr = {2: P_WO, 3: P_W1, 4: P_W2, 6: P_W4}[st]
        aoff = {2: O_OFF, 3: H_OFF, 4: HH_OFF, 6: G_OFF}[st]
        self.tile64_ids()
        a.s('s_mov_b32', 's61', '0x3f803f80')
        self.srd(SRD_A, P_WS, aoff, S * K * 2)
        self.tr_bases(self.V_TB, 160, 5120, True, T)
        aloads = []
        if st != 4:
            a.v('v_lshlrev_b32', vr(T), 4, vL)
            a.s('s_mul_i32', 's68', 's90', NJ * 1024)
            a.s('s_lshl_b32', 's56', sKH, 10)
            a.s('s_add_u32', 's68', 's68', 's56')
            if pre_a:
                pre_a()
            for i in range(ns):
                aloads.append(a.bl('buffer_load_dwordx4', vr(vA + 4 * i, 4), vr(T), sr(SRD_A, 4), 's68', (i & 1) * 2048, 'sc1'))
                if i & 1:
                    a.s('s_add_u32', 's68', 's68', 4096)
        else:
            a.s('s_lshl_b32', 's56', 's90', 4)
            a.v('v_add_u32', vr(T + 4), 's56', vN)
            a.v('v_lshlrev_b32', vr(T + 5), 8, vG)
            for gi, sh in enumerate((1, -1, 2, -2)):
                d = vr(T + gi)
                a.v('v_subrev_u32', vr(T + 6), sh, vr(T + 4))
                a.v('v_lshrrev_b32', vr(T + 7), 4, vr(T + 6))
                a.v('v_mul_u32_u24', vr(T + 7), NJ * 1024, vr(T + 7))
                a.v('v_and_b32', d, 15, vr(T + 6))
                a.v('v_lshl_add_u32', d, d, 4, vr(T + 5))
                a.v('v_add_u32', d, d, vr(T + 7))
                a.v('v_cmp_lt_u32', 'vcc', S - 1, vr(T + 6))
                a.v('v_bfrev_b32', vr(T + 7), 1)
                a.v('v_cndmask_b32', d, d, vr(T + 7), 'vcc')
            a.s('s_lshl_b32', 's68', sKH, 10)
            a.s('s_cmp_eq_u32', sKH, 0)
            a.s('s_cselect_b64', 's[70:71]', -1, 0)
            if pre_a:
                pre_a()
            for i in range(ns):
                g0, g1 = (2 * i) // 5, (2 * i + 1) // 5
                if g0 == g1:
                    vo = vr(T + g0)
                else:
                    vo = vr(T + 8)
                    a.v('v_cndmask_b32', vo, vr(T + g1), vr(T + g0), 's[70:71]')
                aloads.append(a.bl('buffer_load_dwordx4', vr(vA + 4 * i, 4), vo, sr(SRD_A, 4), 's68', (i & 1) * 2048, 'sc1'))
                if i & 1:
                    a.s('s_add_u32', 's68', 's68', 4096)
        vFO = 'v7'
        a.v('v_lshrrev_b32', vr(T + 9), 1, vG)
        a.v('v_lshlrev_b32', vFO, 8, vr(T + 9))
        a.v('v_lshl_add_u32', vFO, vN, 4, vFO)
        a.v('v_and_b32', vr(T + 9), 1, vG)
        a.v('v_lshl_add_u32', vFO, vr(T + 9), 3, vFO)
        a.s('s_mul_i32', 's69', 's90', 20480)
        a.s('s_mul_i32', 's56', 's89', 5)
        a.s('s_mul_i32', 's57', sKH, 3)
        a.s('s_add_u32', 's56', 's56', 's57')
        a.s('s_lshl_b32', 's72', 's56', 5)
        a.s('s_lshl_b32', 's56', 's56', 9)
        a.s('s_add_u32', 's69', 's69', 's56')
        vR = 112
        if st == 2:
            self.srd(SRD_R, P_X, 0, ACT)
            a.s('s_lshl_b32', 's56', 's90', 4)
            a.v('v_add_u32', vr(T + 9), 's56', vN)
            a.v('v_mul_u32_u24', vr(T + 9), 1280, vr(T + 9))
            a.v('v_lshl_add_u32', vr(T + 9), vG, 3, vr(T + 9))
            for u in range(3):
                a.bl('buffer_load_dwordx2', vr(vR + 2 * u, 2), vr(T + 9), sr(SRD_R, 4), 's72', 32 * u)
        elif st in (4, 6):
            self.srd(SRD_R, P_WS, H_OFF, ACT)
            for u in range(3):
                a.bl('buffer_load_dwordx2', vr(vR + 2 * u, 2), vFO, sr(SRD_R, 4), 's69', 512 * u, 'sc1')
            if st == 4:
                self.srd(SRD_E2, P_WS, ST_OFF, S * 8)
                a.s('s_lshl_b32', 's56', 's90', 7)
                a.v('v_lshlrev_b32', vr(T + 9), 3, vN)
                a.bl('buffer_load_dwordx2', vr(vR + 12, 2), vr(T + 9), sr(SRD_E2, 4), 's56', 0, 'sc1')
            else:
                self.srd(SRD_E2, P_WS, X1_OFF, ACT)
                for u in range(3):
                    a.bl('buffer_load_dwordx2', vr(vR + 6 + 2 * u, 2), vFO, sr(SRD_E2, 4), 's69', 512 * u, 'sc1')
        syncs = {}
        hook = None
        if st != 6:
            a.wait_vm(pre_b[-1])
            a.barrier()
            koffs = [i * 10240 for i in range(ns)]
            if st == 3:
                self.colsum_pre(5, 160, 0, 20, None)
                for q in range(4):
                    a.v('v_mov_b32', vr(self.V_ST + q), 0)
        else:
            a.wait_vm(pre_b[-1])
            a.barrier()
            koffs = [((2 * i) // 8 % 3) * 40960 + ((2 * i) % 8) * 5120 for i in range(ns)]
            pend = {}

            def hook(i, pend=pend):
                pass
        if st == 6:
            self.loop6(vA, ns, pre_b)
        else:
            self.gemm_loop(1, 5, koffs, vA, self.V_ACC, self.V_B, self.V_TB, True, [True] * 5,
                           stats=self.V_ST if st == 3 else None)
        ACC = self.V_ACC
        a.s('s_lshl_b32', 's56', sW, 12)
        a.s('s_xor_b32', 's57', 's56', 4 << 12)
        a.s('s_add_u32', 's56', 's56', self.XCH64)
        a.s('s_add_u32', 's57', 's57', self.XCH64)
        a.v('v_lshl_add_u32', vr(T), vL, 4, 's56')
        a.v('v_lshl_add_u32', vr(T + 1), vL, 4, 's57')
        if st == 3:
            st_ = self.V_ST
            a.v('v_add_f32', vr(st_), vr(st_), vr(st_ + 1))
            a.v('v_add_f32', vr(st_ + 1), vr(st_ + 2), vr(st_ + 3))
            self.greduce(vr(st_), vr(T + 2))
            self.greduce(vr(st_ + 1), vr(T + 2))
            a.dsw('ds_write_b64', vr(T), vr(st_, 2), 3072)
        for u in range(3):
            a.dsw('ds_write_b128', vr(T), vr(ACC + (2 + u) * 4, 4), 1024 * u)
        a.wait_lgkm0()
        a.barrier()
        if post_loop:
            post_loop()
        a.s('s_lshl_b32', 's56', sKH, 10)
        a.v('v_add_u32', vr(T + 2), 's56', vr(T + 1))
        X = self.V_B
        for u in range(3):
            a.dsr('ds_read_b128', vr(X + 4 * u, 4), vr(T + 2), 1024 * u)
        if st == 3:
            a.dsr('ds_read_b64', vr(X + 12, 2), vr(T + 1), 3072)
            a.s('s_mul_i32', 's56', sKH, 192)
            a.s('s_add_u32', 's56', 's56', self.CST + 4096)
            a.v('v_lshl_add_u32', vr(T + 3), vG, 4, 's56')
            for u in range(3):
                a.dsr('ds_read_b128', vr(X + 16 + 4 * u, 4), vr(T + 3), 64 * u)
        for u in range(3):
            for r in range(4):
                a.v('v_add_f32', vr(ACC + 4 * u + r), vr(ACC + 4 * u + r), vr(X + 4 * u + r))
        ooff = {2: H_OFF, 3: HH_OFF, 4: X1_OFF}.get(st)
        if st == 6:
            self.srd(SRD_O, P_OUT, 0, ACT)
        else:
            self.srd(SRD_O, P_WS, ooff, ACT)
        PK = X + 32
        if st == 3:
            st_ = self.V_ST
            a.v('v_add_f32', vr(st_), vr(st_), vr(X + 12))
            a.v('v_add_f32', vr(st_ + 1), vr(st_ + 1), vr(X + 13))
            al, be = vr(T + 4), vr(T + 5)
            self.ln_finalize(vr(st_), vr(st_ + 1), al, be, vr(T + 6), vr(T + 7), vr(T + 8), True, vr(T + 10), vr(T + 11))
            self.gelu_consts()
            for u in range(3):
                for r in range(4):
                    a.v('v_mul_f32', vr(X + 16 + 4 * u + r), vr(X + 16 + 4 * u + r), be)
                    a.v('v_fma_f32', vr(ACC + 4 * u + r), vr(ACC + 4 * u + r), al, '-' + vr(X + 16 + 4 * u + r))
                for h in range(2):
                    self.gelu_pair(vr(PK + 2 * u + h), vr(ACC + 4 * u + 2 * h), vr(ACC + 4 * u + 2 * h + 1), vr(T + 6), vr(T + 7), None)
            self.srd(SRD_E2, P_WS, ST_OFF, S * 8)
            lab = a.label()
            a.s('s_or_b32', 's56', 's89', sKH)
            a.s('s_cmp_lg_u32', 's56', 0)
            a.branch('s_cbranch_scc1', lab)
            a.begin_cond()
            a.s('s_lshl_b32', 's56', 's90', 7)
            a.v('v_lshlrev_b32', vr(T + 9), 3, vN)
            a.s('s_mov_b64', 's[58:59]', 'exec')
            a.s('s_mov_b64', 'exec', '0xffff')
            a.bs('buffer_store_dwordx2', vr(T + 10, 2), vr(T + 9), sr(SRD_E2, 4), 's56', 0, 'sc1')
            a.s('s_mov_b64', 'exec', 's[58:59]')
            a.end_cond()
            a.place(lab)
        else:
            for u in range(3):
                for h in range(2):
                    y0, y1 = vr(ACC + 4 * u + 2 * h), vr(ACC + 4 * u + 2 * h + 1)
                    r0, r1, t = vr(T + 4), vr(T + 5), vr(T + 6)
                    self.bf16r2(y0, y1, y0, y1, t)
                    a.v('v_lshlrev_b32', r0, 16, vr(vR + 2 * u + h))
                    a.v('v_and_b32', r1, '0xffff0000', vr(vR + 2 * u + h))
                    if st == 4:
                        a.v('v_sub_f32', r0, r0, vr(vR + 12))
                        a.v('v_sub_f32', r1, r1, vr(vR + 12))
                        self.bf16r2(r0, r1, r0, r1, t)
                        a.v('v_mul_f32', r0, r0, vr(vR + 13))
                        a.v('v_mul_f32', r1, r1, vr(vR + 13))
                        self.bf16r2(r0, r1, r0, r1, t)
                    if st == 6:
                        x0, x1 = vr(T + 7), vr(T + 8)
                        a.v('v_lshlrev_b32', x0, 16, vr(vR + 6 + 2 * u + h))
                        a.v('v_and_b32', x1, '0xffff0000', vr(vR + 6 + 2 * u + h))
                        a.v('v_add_f32', y0, y0, x0)
                        a.v('v_add_f32', y1, y1, x1)
                        self.bf16r2(y0, y1, y0, y1, t)
                    a.v('v_add_f32', y0, y0, r0)
                    a.v('v_add_f32', y1, y1, r1)
                    a.v('v_cvt_pk_bf16_f32', vr(PK + 2 * u + h), y0, y1)
        last = None
        if st == 6:
            a.s('s_lshl_b32', 's56', 's90', 4)
            a.v('v_add_u32', vr(T + 9), 's56', vN)
            a.v('v_mul_u32_u24', vr(T + 9), 1280, vr(T + 9))
            a.v('v_lshl_add_u32', vr(T + 9), vG, 3, vr(T + 9))
            vo, so, step, fl = vr(T + 9), 's72', 32, ''
        else:
            vo, so, step, fl = vFO, 's69', 512, 'sc1'
        a.s('s_lshl_b32', 's56', sKH, 31)
        a.v('v_or_b32', vr(T + 8), 's56', vo)
        for u in range(3):
            last = a.bs('buffer_store_dwordx2', vr(PK + 2 * u, 2), vo if u < 2 else vr(T + 8), sr(SRD_O, 4), so, step * u, fl)
        if post_store:
            post_store()
        return last

    def loop6(self, vA, ns, pre_b):
        a = self.a
        nct, nb = 5, 20
        vB, vTB, vACC = self.V_B, self.V_TB, self.V_ACC
        NCH = 7
        dm = {0: pre_b[4], 1: pre_b[9], 2: pre_b[14]}
        cur = [0]

        def setbase(slot):
            inc = slot * 40960 - cur[0]
            if inc:
                for b in range(4):
                    if inc > 0:
                        a.v('v_add_u32', vr(vTB + b), inc, vr(vTB + b))
                    else:
                        a.v('v_subrev_u32', vr(vTB + b), -inc, vr(vTB + b))
                cur[0] += inc

        def reads(i):
            c = i // 4
            if i % 4 == 0 and c >= 1:
                a.wait_lgkm0()
                if c >= 3:
                    a.wait_vm(dm[c])
                a.barrier()
                if c + 2 < NCH:
                    cc = c + 2
                    nwg = 5 if cc < NCH - 1 else 4
                    r = self.dma_issue(self.V_PAT, 10, 1280, (cc % 3) * 40960, 0, nwg, row0=cc * 256)
                    dm[cc] = r[-1]
                setbase(c % 3)
            buf = vB + (i & 1) * nb
            for u in range(nct):
                off = ((2 * i) % 8) * 5120 + 32 * u
                bsel = 2 if u >= 2 else 0
                a.dsr('ds_read_b64_tr_b16', vr(buf + 4 * u, 2), vr(vTB + bsel), off)
                a.dsr('ds_read_b64_tr_b16', vr(buf + 4 * u + 2, 2), vr(vTB + bsel + 1), off)

        reads(0)
        for i in range(ns):
            if i + 1 < ns:
                reads(i + 1)
            buf = vB + (i & 1) * nb
            for u in range(nct):
                acc = vr(vACC + u * 4, 4)
                a.mfma(acc, vr(buf + 4 * u, 4), vr(vA + i * 4, 4), '0' if i == 0 else acc)

    def b64_issue(self, st, u0=0, u1=None):
        wptr = {2: P_WO, 3: P_W1, 4: P_W2, 6: P_W4}[st]
        K = F if st == 6 else D
        if u0 == 0:
            self.srd(SRD_B, wptr, 0, K * 1280)
        if u1 is None:
            u1 = 15 if st == 6 else 13
        return self.dma_issue(self.V_PAT, 10, 1280, 0, u0, u1)

    XCH5 = 0

    def tile128_ids(self):
        a = self.a
        a.s('s_lshr_b32', 's91', sI, 4)
        a.s('s_lshl_b32', 's56', sXCD, 1)
        a.s('s_add_u32', 's91', 's91', 's56')
        a.s('s_and_b32', 's92', sI, 15)

    def b5_setup(self):
        a = self.a
        self.tile128_ids()
        a.s('s_mul_i32', 's67', 's92', 27)
        a.s('s_lshr_b32', 's67', 's67', 2)
        a.s('s_lshl_b32', 's73', 's67', 5)
        self.dma_patterns(self.V_PAT, 14, 3456, ('lin', 's73'), self.V_CS)

    def b5_issue(self, u0=0, u1=18):
        if u0 == 0:
            self.srd(SRD_B, P_W3, 0, D * 3456)
        return self.dma_issue(self.V_PAT, 14, 3456, 0, u0, u1)

    def stage5(self, pre_b, post_loop=None, post_store=None, pre_a=None):
        a = self.a
        T = self.V_T
        vA = 164
        self.V_B = 108
        ns = 10
        self.tile128_ids()
        a.s('s_mul_i32', 's67', 's92', 27)
        a.s('s_lshr_b32', 's67', 's67', 2)
        a.s('s_mov_b32', 's61', '0x3f803f80')
        self.srd(SRD_A, P_WS, X1_OFF, ACT)
        self.tr_bases(self.V_TB, 224, 7168, False, T)
        a.s('s_lshl_b32', 's66', 's91', 3)
        a.s('s_lshl_b32', 's56', sRG, 1)
        a.s('s_add_u32', 's66', 's66', 's56')
        a.s('s_add_u32', 's74', 's66', sKH)
        a.s('s_xor_b32', 's56', sKH, 1)
        a.s('s_add_u32', 's75', 's66', 's56')
        a.v('v_lshlrev_b32', vr(T), 4, vL)
        a.s('s_lshl_b32', 's56', sKH, 10)
        a.s('s_mul_i32', 's68', 's74', 20480)
        a.s('s_add_u32', 's68', 's68', 's56')
        a.s('s_mul_i32', 's69', 's75', 20480)
        a.s('s_add_u32', 's69', 's69', 's56')
        if pre_a:
            pre_a()
        for i in range(ns):
            a.bl('buffer_load_dwordx4', vr(vA + 4 * i, 4), vr(T), sr(SRD_A, 4), 's68', (i & 1) * 2048, 'sc1')
            a.bl('buffer_load_dwordx4', vr(vA + 40 + 4 * i, 4), vr(T), sr(SRD_A, 4), 's69', (i & 1) * 2048, 'sc1')
            if i & 1:
                a.s('s_add_u32', 's68', 's68', 4096)
                a.s('s_add_u32', 's69', 's69', 4096)
        a.wait_vm(pre_b[-1])
        a.barrier()
        self.CST = 147456 + 4096
        self.colsum_pre(7, 224, 0, 20, None)
        for q in range(8):
            a.v('v_mov_b32', vr(self.V_ST + q), 0)
        koffs = [i * 2 * 7168 for i in range(ns)]
        self.gemm_loop(2, 7, koffs, vA, self.V_ACC, self.V_B, self.V_TB, False, [True] * 7, stats=self.V_ST)
        ACC = self.V_ACC
        st_ = self.V_ST
        for r in range(2):
            a.v('v_add_f32', vr(st_ + 4 * r), vr(st_ + 4 * r), vr(st_ + 4 * r + 1))
            a.v('v_add_f32', vr(st_ + 4 * r + 1), vr(st_ + 4 * r + 2), vr(st_ + 4 * r + 3))
            self.greduce(vr(st_ + 4 * r), vr(T + 2))
            self.greduce(vr(st_ + 4 * r + 1), vr(T + 2))
        a.wait_lgkm0()
        a.barrier()
        a.s('s_lshl_b32', 's56', sW, 13)
        a.v('v_lshl_add_u32', vr(T), vL, 4, 's56')
        a.s('s_xor_b32', 's57', 's56', 4 << 13)
        a.v('v_lshl_add_u32', vr(T + 1), vL, 4, 's57')
        XO = self.XCH5
        a.dsw('ds_write_b64', vr(T), vr(st_ + 4, 2), XO + 7168)
        for u in range(7):
            a.dsw('ds_write_b128', vr(T), vr(ACC + 28 + 4 * u, 4), XO + 1024 * u)
        a.wait_lgkm0()
        a.barrier()
        X = self.V_B
        for u in range(7):
            a.dsr('ds_read_b128', vr(X + 4 * u, 4), vr(T + 1), XO + 1024 * u)
        a.dsr('ds_read_b64', vr(X + 28, 2), vr(T + 1), XO + 7168)
        a.v('v_lshlrev_b32', vr(T + 3), 4, vG)
        a.v('v_add_u32', vr(T + 3), self.CST + 4096, vr(T + 3))
        CSR = ACC + 28
        for u in range(7):
            a.dsr('ds_read_b128', vr(CSR + 4 * u, 4), vr(T + 3), 64 * u)
        if post_loop:
            a.wait_lgkm0()
            a.barrier()
            post_loop()
        a.v('v_add_f32', vr(st_), vr(st_), vr(X + 28))
        a.v('v_add_f32', vr(st_ + 1), vr(st_ + 1), vr(X + 29))
        al, be = vr(T + 4), vr(T + 5)
        self.ln_finalize(vr(st_), vr(st_ + 1), al, be, vr(T + 6), vr(T + 7), vr(T + 8), False)
        self.gelu_consts()
        self.srd(SRD_O, P_WS, G_OFF, G_BYTES)
        vFO = 'v7'
        a.v('v_lshrrev_b32', vr(T + 9), 1, vG)
        a.v('v_lshlrev_b32', vFO, 8, vr(T + 9))
        a.v('v_lshl_add_u32', vFO, vN, 4, vFO)
        a.v('v_and_b32', vr(T + 9), 1, vG)
        a.v('v_lshl_add_u32', vFO, vr(T + 9), 3, vFO)
        a.s('s_mul_i32', 's69', 's74', 54 * 1024)
        a.s('s_lshl_b32', 's56', 's67', 9)
        a.s('s_add_u32', 's69', 's69', 's56')
        PK = X + 32
        last = None
        for u in range(7):
            for r in range(4):
                a.v('v_add_f32', vr(ACC + 4 * u + r), vr(ACC + 4 * u + r), vr(X + 4 * u + r))
                a.v('v_mul_f32', vr(CSR + 4 * u + r), vr(CSR + 4 * u + r), be)
                a.v('v_fma_f32', vr(ACC + 4 * u + r), vr(ACC + 4 * u + r), al, '-' + vr(CSR + 4 * u + r))
            for h in range(2):
                self.gelu_pair(vr(PK + 2 * u + h), vr(ACC + 4 * u + 2 * h), vr(ACC + 4 * u + 2 * h + 1), vr(T + 6), vr(T + 7), None)
            last = a.bs('buffer_store_dwordx2', vr(PK + 2 * u, 2), vFO, sr(SRD_O, 4), 's69', 512 * u, 'sc1')
        self.CST = Gen.CST
        if post_store:
            post_store()
        return last

    def stage1(self, post_q=None, post_store=None):
        a = self.a
        T = self.V_T
        vA = 164
        self.V_B = 108
        ns = 10
        QB = 106496
        SC = 155648
        self.tile128_ids()
        a.s('s_mov_b32', 's61', '0x3f803f80')
        a.s('s_xor_b32', 's76', 's92', 1)
        self.srd(SRD_A, P_X, 0, ACT)
        self.srd(SRD_B, P_WQKV, 0, D * 3840)
        a.s('s_mul_i32', 's67', 's92', 80)
        a.s('s_add_u32', 's67', 's67', 1280)
        self.dma_patterns(self.V_PAT, 10, 3840, ('kv', 's67'), T)
        VQP = 244
        a.s('s_mul_i32', 's67', 's76', 80)
        self.dma_patterns(VQP, 6, 3840, ('q', 's67'), T)
        a.s('s_lshl_b32', 's66', 's91', 3)
        a.s('s_lshl_b32', 's56', sRG, 1)
        a.s('s_add_u32', 's66', 's66', 's56')
        a.s('s_add_u32', 's74', 's66', sKH)
        a.s('s_xor_b32', 's56', sKH, 1)
        a.s('s_add_u32', 's75', 's66', 's56')
        a.v('v_mul_u32_u24', vr(T), 1280, vN)
        a.v('v_lshl_add_u32', vr(T), vG, 4, vr(T))
        a.s('s_lshl_b32', 's56', sKH, 7)
        a.s('s_mul_i32', 's68', 's74', 20480)
        a.s('s_add_u32', 's68', 's68', 's56')
        a.s('s_mul_i32', 's69', 's75', 20480)
        a.s('s_add_u32', 's69', 's69', 's56')
        dm = []
        plan = [(0, 2, 0, 3), (2, 4, 3, 5), (4, 6, 5, 8), (6, 8, 8, 10), (8, 10, 10, 13)]
        syncs = {}
        for (i0, i1, u0, u1) in plan:
            for i in range(i0, i1):
                off = (i >> 1) * 256 + (i & 1) * 64
                a.bl('buffer_load_dwordx4', vr(vA + 4 * i, 4), vr(T), sr(SRD_A, 4), 's68', off)
                a.bl('buffer_load_dwordx4', vr(vA + 40 + 4 * i, 4), vr(T), sr(SRD_A, 4), 's69', off)
            r = self.dma_issue(self.V_PAT, 10, 3840, 0, u0, u1)
            syncs[i0] = r[-1]
        qd = self.dma_issue(VQP, 6, 3840, QB, 0, 6)
        self.get_nonce()
        self.tr_bases(self.V_TB, 160, 2 * 5120, False, T)
        for q in range(8):
            a.v('v_mov_b32', vr(self.V_ST + q), 0)
        for u in range(8):
            a.v('v_mov_b32', vr(self.V_CS + u), 0)
        koffs = [(4 * (i >> 1) + (i & 1)) * 5120 for i in range(ns)]
        self.gemm_loop(2, 5, koffs, vA, self.V_ACC, self.V_B, self.V_TB, False, [False] * 5, syncs=syncs,
                       stats=self.V_ST, cs=self.V_CS)
        ACC = self.V_ACC
        st_ = self.V_ST
        for r in range(2):
            a.v('v_add_f32', vr(st_ + 4 * r), vr(st_ + 4 * r), vr(st_ + 4 * r + 1))
            a.v('v_add_f32', vr(st_ + 4 * r + 1), vr(st_ + 4 * r + 2), vr(st_ + 4 * r + 3))
            self.greduce(vr(st_ + 4 * r), vr(T + 2))
            self.greduce(vr(st_ + 4 * r + 1), vr(T + 2))
        self.CST = SC
        a.wait_lgkm0()
        self.colsum_reduce(5, self.V_CS)
        QB2 = 65536
        qd2 = self.dma_issue(VQP, 6, 3840, QB2, 0, 2, row0=512)
        a.s('s_lshl_b32', 's56', sW, 13)
        a.v('v_lshl_add_u32', vr(T), vL, 4, 's56')
        a.s('s_xor_b32', 's57', 's56', 4 << 13)
        a.v('v_lshl_add_u32', vr(T + 1), vL, 4, 's57')
        a.dsw('ds_write_b64', vr(T), vr(st_ + 4, 2), 5120)
        for u in range(5):
            a.dsw('ds_write_b128', vr(T), vr(ACC + 20 + 4 * u, 4), 1024 * u)
        a.wait_lgkm0()
        a.barrier()
        X = self.V_B
        for u in range(5):
            a.dsr('ds_read_b128', vr(X + 4 * u, 4), vr(T + 1), 1024 * u)
        a.dsr('ds_read_b64', vr(X + 20, 2), vr(T + 1), 5120)
        a.v('v_lshlrev_b32', vr(T + 3), 2, vN)
        a.v('v_add_u32', vr(T + 3), SC + 4096, vr(T + 3))
        for u in range(5):
            a.dsr('ds_read_b32', vr(X + 24 + u), vr(T + 3), 64 * u)
        a.v('v_add_f32', vr(st_), vr(st_), vr(X + 20))
        a.v('v_add_f32', vr(st_ + 1), vr(st_ + 1), vr(X + 21))
        AL, BE = 'v240', 'v241'
        AL, BE = 'v248', 'v249'
        self.ln_finalize(vr(st_), vr(st_ + 1), AL, BE, vr(T + 6), vr(T + 7), vr(T + 8), False)
        a.s('s_lshl_b32', 's56', sW, 13)
        a.v('v_lshl_add_u32', vr(T + 4), vN, 2, 's56')
        a.dsw('ds_write_b32', vr(T + 4), AL, 6144)
        a.dsw('ds_write_b32', vr(T + 4), BE, 6144 + 64)
        a.v('v_lshl_add_u32', vr(T + 4), vG, 4, 's56')
        a.wait_lgkm0()
        a.dsr('ds_read_b128', vr(X + 32, 4), vr(T + 4), 6144)
        a.dsr('ds_read_b128', vr(X + 36, 4), vr(T + 4), 6144 + 64)
        a.v('v_cmp_gt_u32', 's[70:71]', 8, vN)
        PK = X + 40
        for u in range(5):
            for r in range(4):
                y = vr(ACC + 4 * u + r)
                a.v('v_add_f32', y, y, vr(X + 4 * u + r))
                a.v('v_mul_f32', vr(T + 6), vr(X + 24 + u), vr(X + 36 + r))
                a.v('v_fma_f32', y, y, vr(X + 32 + r), '-' + vr(T + 6))
            for h in range(2):
                y0, y1 = vr(ACC + 4 * u + 2 * h), vr(ACC + 4 * u + 2 * h + 1)
                if u <= 2:
                    self.bf16r2(y0, y1, y0, y1, vr(T + 6))
                    self.phi_pair(vr(T + 8), vr(T + 9), y0, y1, vr(T + 6), vr(T + 7))
                    if u == 2:
                        a.v('v_cndmask_b32', y0, y0, vr(T + 8), 's[70:71]')
                        a.v('v_cndmask_b32', y1, y1, vr(T + 9), 's[70:71]')
                        a.v('v_cvt_pk_bf16_f32', vr(PK + 2 * u + h), y0, y1)
                    else:
                        a.v('v_cvt_pk_bf16_f32', vr(PK + 2 * u + h), vr(T + 8), vr(T + 9))
                else:
                    a.v('v_cvt_pk_bf16_f32', vr(PK + 2 * u + h), y0, y1)
        ONE = vr(T + 10, 2)
        a.v('v_mov_b32', vr(T + 10), 's61')
        a.v('v_mov_b32', vr(T + 11), 's61')
        pairs = [(0, 2), (0, 3), (1, 2), (1, 3), (1, 4), (2, 3), (2, 4), (0, 'z'), (1, 'z'), (2, 'z')]
        KV = ACC
        for idx, (kt, vt) in enumerate(pairs):
            Bop = ONE if vt == 'z' else vr(PK + 2 * vt, 2)
            a.mfma(vr(KV + 4 * idx, 4), vr(PK + 2 * kt, 2), Bop, '0', shape='16x16x16')
        a.wait_lgkm0()
        a.barrier()
        a.s('s_lshl_b32', 's56', sW, 13)
        for idx, (kt, vt) in enumerate(pairs):
            kc, ad, t2 = vr(T + 4), vr(T + 5), vr(T + 6)
            a.v('v_lshl_add_u32', kc, vG, 2, kt * 16)
            a.v('v_cmp_lt_u32', 'vcc', 19, kc)
            a.v('v_cndmask_b32', vr(T + 7), 0, 1, 'vcc')
            a.v('v_mul_u32_u24', t2, 20, vr(T + 7))
            a.v('v_sub_u32', ad, kc, t2)
            if vt == 'z':
                a.v('v_mov_b32', vr(T + 8), 20)
                a.v('v_cmp_eq_u32', 's[72:73]', 0, vN)
            else:
                a.v('v_add_u32', vr(T + 8), vt * 16 - 40, vN)
                a.v('v_sub_u32', vr(T + 8), vr(T + 8), t2)
                a.v('v_cmp_gt_u32', 's[72:73]', 20, vr(T + 8))
            a.v('v_cmp_gt_u32', 'vcc', 40, kc)
            a.s('s_and_b64', 's[72:73]', 's[72:73]', 'vcc')
            a.v('v_mul_u32_u24', vr(T + 7), 420, vr(T + 7))
            a.v('v_mad_u32_u24', vr(T + 8), vr(T + 8), 20, vr(T + 7))
            a.v('v_add_u32', ad, ad, vr(T + 8))
            a.v('v_lshl_add_u32', ad, ad, 2, 's56')
            a.s('s_mov_b64', 's[58:59]', 'exec')
            a.s('s_mov_b64', 'exec', 's[72:73]')
            a.dsw('ds_write_b128', ad, vr(KV + 4 * idx, 4), 0)
            a.s('s_mov_b64', 'exec', 's[58:59]')
        a.wait_lgkm0()
        a.barrier()
        self.srd(SRD_O, P_WS, KVP_OFF, 256 * KVP_BLK)
        a.v('v_lshlrev_b32', vr(T), 4, vTID)
        a.v('v_cmp_gt_u32', 'vcc', 210, vTID)
        a.v('v_bfrev_b32', vr(T + 1), 1)
        a.v('v_cndmask_b32', vr(T + 1), vr(T + 1), vr(T), 'vcc')
        a.v('v_min_u32', vr(T), 4096, vr(T))
        for w in range(8):
            a.dsr('ds_read_b128', vr(X + 4 * w, 4), vr(T), 8192 * w)
        for w in range(1, 8):
            for r in range(4):
                a.v('v_add_f32', vr(X + r), vr(X + r), vr(X + 4 * w + r))
        a.s('s_lshl_b32', 's56', 's92', 4)
        a.s('s_add_u32', 's77', 's56', 's91')
        a.s('s_mul_i32', 's56', 's77', KVP_BLK)
        stp = a.bs('buffer_store_dwordx4', vr(X, 4), vr(T + 1), sr(SRD_O, 4), 's56', 0, 'sc1')
        self.read_nonce()
        self.signal(0, 's77', stp)
        a.wait_vm(qd2[-1])
        a.barrier()
        self.tr_bases(self.V_TB, 96, 2 * 3072, False, T)
        for u in range(3):
            a.v('v_mov_b32', vr(self.V_CS + u), 0)
        koffs = []
        for i in range(ns):
            j = 4 * (i >> 1) + (i & 1)
            koffs.append(QB + j * 3072 if j < 16 else QB2 + (j - 16) * 3072)
        order = [8, 9, 0, 1, 2, 3, 4, 5, 6, 7]
        self.gemm_loop_ord(2, 3, koffs, order, vA, ACC, self.V_B, self.V_TB, cs=self.V_CS)
        a.wait_lgkm0()
        self.colsum_reduce(3, self.V_CS)
        XQ = self.XQ
        a.s('s_lshl_b32', 's56', sW, 12)
        a.s('s_xor_b32', 's57', 's56', 4 << 12)
        a.s('s_add_u32', 's56', 's56', XQ)
        a.s('s_add_u32', 's57', 's57', XQ)
        a.v('v_lshl_add_u32', vr(T), vL, 4, 's56')
        a.v('v_lshl_add_u32', vr(T + 1), vL, 4, 's57')
        for u in range(3):
            a.dsw('ds_write_b128', vr(T), vr(ACC + 12 + 4 * u, 4), 1024 * u)
        a.s('s_lshl_b32', 's78', 's76', 4)
        a.wait_lgkm0()
        self.wait_flags(0, 's78', 16)
        a.v('v_lshlrev_b32', vr(T + 2), 4, vTID)
        a.v('v_cmp_gt_u32', 'vcc', 210, vTID)
        a.v('v_bfrev_b32', vr(T + 3), 1)
        a.v('v_cndmask_b32', vr(T + 3), vr(T + 3), vr(T + 2), 'vcc')
        a.s('s_mul_i32', 's56', 's78', KVP_BLK)
        PB = vA
        for p in range(16):
            a.bl('buffer_load_dwordx4', vr(PB + 4 * p, 4), vr(T + 3), sr(SRD_O, 4), 's56', 0, 'sc1')
            if p < 15:
                a.s('s_add_u32', 's56', 's56', KVP_BLK)
        if post_q:
            post_q()
        for u in range(3):
            a.dsr('ds_read_b128', vr(X + 4 * u, 4), vr(T + 1), 1024 * u)
        a.v('v_lshlrev_b32', vr(T + 4), 4, vG)
        a.v('v_add_u32', vr(T + 4), SC + 4096, vr(T + 4))
        for u in range(3):
            a.dsr('ds_read_b128', vr(X + 12 + 4 * u, 4), vr(T + 4), 64 * u)
        PQ = X + 40
        for u in range(3):
            for r in range(4):
                y = vr(ACC + 4 * u + r)
                a.v('v_add_f32', y, y, vr(X + 4 * u + r))
                a.v('v_mul_f32', vr(T + 6), vr(X + 12 + 4 * u + r), BE)
                a.v('v_fma_f32', y, y, AL, '-' + vr(T + 6))
            for h in range(2):
                y0, y1 = vr(ACC + 4 * u + 2 * h), vr(ACC + 4 * u + 2 * h + 1)
                self.bf16r2(y0, y1, y0, y1, vr(T + 6))
                self.phi_pair(vr(T + 8), vr(T + 9), y0, y1, vr(T + 6), vr(T + 7))
                a.v('v_cvt_pk_bf16_f32', vr(PQ + 2 * u + h), vr(T + 8), vr(T + 9))
        KT = XQ + 32768
        KZ = KT + 2 * 21 * 48
        for p in range(1, 16):
            for r in range(4):
                a.v('v_add_f32', vr(PB + r), vr(PB + r), vr(PB + 4 * p + r))
        a.v('v_cvt_pk_bf16_f32', vr(PB), vr(PB), vr(PB + 1))
        a.v('v_cvt_pk_bf16_f32', vr(PB + 1), vr(PB + 2), vr(PB + 3))
        a.v('v_mul_u32_u24', vr(T + 4), 13108, vTID)
        a.v('v_lshrrev_b32', vr(T + 4), 16, vr(T + 4))
        for t in range(512):
            assert (t * 13108) >> 16 == t // 5
        a.v('v_mul_u32_u24', vr(T + 5), 5, vr(T + 4))
        a.v('v_sub_u32', vr(T + 5), vTID, vr(T + 5))
        a.v('v_mul_u32_u24', vr(T + 4), 48, vr(T + 4))
        a.v('v_lshl_add_u32', vr(T + 4), vr(T + 5), 3, vr(T + 4))
        a.v('v_mov_b32', vr(T + 5), KZ - KT)
        a.v('v_cmp_gt_u32', 'vcc', 210, vTID)
        a.v('v_cndmask_b32', vr(T + 4), vr(T + 5), vr(T + 4), 'vcc')
        a.v('v_add_u32', vr(T + 4), KT, vr(T + 4))
        a.dsw('ds_write_b64', vr(T + 4), vr(PB, 2), 0)
        a.wait_lgkm0()
        a.barrier()
        FR = PB + 8
        zt = vr(T + 5)
        a.v('v_mov_b32', zt, KZ)
        for hd in range(2):
            for hf in range(2):
                d0 = {(0, 0): 0, (0, 1): 16, (1, 0): -4, (1, 1): 12}[(hd, hf)]
                if (hd, hf) == (0, 0):
                    msk = None
                elif (hd, hf) == (0, 1):
                    a.v('v_cmp_eq_u32', 's[72:73]', 0, vG); msk = 's[72:73]'
                elif (hd, hf) == (1, 0):
                    a.v('v_cmp_le_u32', 's[72:73]', 1, vG); msk = 's[72:73]'
                else:
                    a.v('v_cmp_ge_u32', 's[72:73]', 1, vG); msk = 's[72:73]'
                for fi in range(3):
                    ad = vr(T + 6)
                    if fi == 0:
                        a.v('v_mul_u32_u24', ad, 48, vN)
                    elif fi == 1:
                        a.v('v_min_u32', ad, 4, vN)
                        a.v('v_mul_u32_u24', ad, 48, ad)
                        a.v('v_add_u32', ad, 16 * 48, ad)
                    else:
                        a.v('v_mov_b32', ad, 20 * 48)
                    a.v('v_lshl_add_u32', ad, vG, 3, ad)
                    a.v('v_add_u32', ad, KT + hd * 21 * 48 + d0 * 2, ad)
                    if msk:
                        a.v('v_cndmask_b32', ad, zt, ad, msk)
                    a.dsr('ds_read_b64', vr(FR + (hd * 3 + fi) * 4 + 2 * hf, 2), ad, 0)
        NUM = ACC
        for hd in range(2):
            Bop = vr(PQ + 2 * hd, 4)
            for fi in range(3):
                a.mfma(vr(NUM + (hd * 3 + fi) * 4, 4), vr(FR + (hd * 3 + fi) * 4, 4), Bop, '0')
        self.srd(SRD_E2, P_WS, O_OFF, ACT)
        last = None
        for hd in range(2):
            den = vr(NUM + (hd * 3 + 2) * 4)
            self.bf16r(den, den)
            a.v('v_add_f32', den, f32(1e-6), den)
            self.bf16r(den, den)
            a.v('v_rcp_f32', den, den)
            for fi in range(2):
                b = NUM + (hd * 3 + fi) * 4
                for h in range(2):
                    y0, y1 = vr(b + 2 * h), vr(b + 2 * h + 1)
                    self.bf16r2(y0, y1, y0, y1, vr(T + 6))
                    a.v('v_mul_f32', y0, y0, den)
                    a.v('v_mul_f32', y1, y1, den)
                    a.v('v_cvt_pk_bf16_f32', vr(T + 8 + h), y0, y1)
                a.s('s_mul_i32', 's56', 's76', 40)
                a.s('s_add_u32', 's56', 's56', hd * 20 + 16 * fi)
                col = vr(T + 4)
                a.v('v_lshl_add_u32', col, vG, 2, 's56')
                a.v('v_lshrrev_b32', vr(T + 5), 3, col)
                a.v('v_lshlrev_b32', vr(T + 5), 8, vr(T + 5))
                a.v('v_lshl_add_u32', vr(T + 5), vN, 4, vr(T + 5))
                a.v('v_bfe_u32', col, col, 2, 1)
                a.v('v_lshl_add_u32', vr(T + 5), col, 3, vr(T + 5))
                if fi == 1:
                    a.v('v_cmp_eq_u32', 'vcc', 0, vG)
                    a.v('v_bfrev_b32', col, 1)
                    a.v('v_cndmask_b32', vr(T + 5), col, vr(T + 5), 'vcc')
                a.s('s_mul_i32', 's57', 's74', 20480)
                last = a.bs('buffer_store_dwordx2', vr(T + 8, 2), vr(T + 5), sr(SRD_E2, 4), 's57', 0, 'sc1')
        self.CST = Gen.CST
        if post_store:
            post_store()
        return last

    XQ = 110592

    def phi_pair(self, d0, d1, y0, y1, t0, t1):
        a = self.a
        for y, t in ((y0, t0), (y1, t1)):
            a.v('v_mul_f32', t, f32(math.log2(math.e)), y)
        for y, t in ((y0, t0), (y1, t1)):
            a.v('v_exp_f32', t, t)
        for y, t, d in ((y0, t0, d0), (y1, t1, d1)):
            a.v('v_add_f32', d, 1.0, y)
            a.v('v_cmp_lt_f32', 'vcc', 0, y)
            a.v('v_cndmask_b32', d, t, d, 'vcc')
        self.bf16r2(d0, d1, d0, d1, t0)
        a.v('v_add_f32', d0, f32(1e-6), d0)
        a.v('v_add_f32', d1, f32(1e-6), d1)
        self.bf16r2(d0, d1, d0, d1, t0)

    def gemm_loop_ord(self, nrt, nct, koffs, order, vA, vACC, vB, vTB, cs=None):
        a = self.a
        ns = len(koffs)
        nb = nct * 4
        bump = [0]

        def reads(p):
            i = order[p]
            buf = vB + (p & 1) * nb
            for u in range(nct):
                off = koffs[i] + 32 * u - bump[0]
                if off + 64 > 65535:
                    inc = koffs[i] - bump[0]
                    for b in range(2):
                        a.v('v_add_u32', vr(vTB + b), inc, vr(vTB + b))
                    bump[0] += inc
                    off = koffs[i] + 32 * u - bump[0]
                a.dsr('ds_read_b64_tr_b16', vr(buf + 4 * u, 2), vr(vTB), off)
                a.dsr('ds_read_b64_tr_b16', vr(buf + 4 * u + 2, 2), vr(vTB + 1), off)

        reads(0)
        for p in range(ns):
            i = order[p]
            if p + 1 < ns:
                reads(p + 1)
            buf = vB + (p & 1) * nb
            for u in range(nct):
                for r in range(nrt):
                    acc = vr(vACC + (r * nct + u) * 4, 4)
                    a.mfma(acc, vr(buf + 4 * u, 4), vr(vA + (r * ns + i) * 4, 4), '0' if p == 0 else acc)
            if cs is not None:
                lab = a.label()
                a.s('s_cmp_lg_u32', sRG, p & 3)
                a.branch('s_cbranch_scc1', lab)
                a.begin_cond()
                for q in range(4):
                    for u in range(nct):
                        a.v('v_dot2c_f32_bf16', vr(cs + u), 's61', vr(buf + 4 * u + q))
                a.end_cond()
                a.place(lab)

    def kernel_text(self, label, body):
        self.a = Asm()
        Gen._kn = getattr(Gen, '_kn', 0) + 1
        self.a._lab = Gen._kn * 10000
        end = f'L_end_{label}'
        self.prologue(end)
        body()
        self.a.place(end)
        self.a.raw('s_endpgm')
        txt = f'.globl {label}\n.p2align 8\n.type {label},@function\n{label}:\n' + self.a.text()
        return txt

    def build_multi(self):
        ks = []

        def k1():
            self.stage1()

        def k64(st):
            def f():
                self.b64_setup()
                b = self.b64_issue(st)
                self.stage64(st, b)
            return f

        def k5():
            self.b5_setup()
            b = self.b5_issue()
            self.stage5(b)
        ks = [('s1_kernel', k1), ('s2_kernel', k64(2)), ('s3_kernel', k64(3)), ('s4_kernel', k64(4)), ('s5_kernel', k5), ('s6_kernel', k64(6))]
        return ks


    def build_persistent(self):
        NE = self.nearly

        def body():
            a = self.a
            pre = {}

            def mk64(st, n0, n1, setup=False):
                def f():
                    if setup:
                        self.b64_setup()
                    if n1 > n0:
                        pre.setdefault(st, []).extend(self.b64_issue(st, n0, n1))
                return f

            def mk5(n0, n1, setup=False):
                def f():
                    if setup:
                        self.b5_setup()
                    if n1 > n0:
                        pre.setdefault(5, []).extend(self.b5_issue(n0, n1))
                return f

            def idx64():
                a.s('s_lshl_b32', 's79', 's88', 3)
                a.s('s_add_u32', 's79', 's79', 's89')

            def idx128():
                a.s('s_lshl_b32', 's79', 's91', 4)
                a.s('s_add_u32', 's79', 's79', 's92')

            last = self.stage1(post_q=mk64(2, 0, NE[0], True), post_store=mk64(2, NE[0], 13))
            idx128()
            self.signal(1, 's79', last)

            def w2():
                a.s('s_lshr_b32', 's62', 's88', 1)
                a.s('s_lshl_b32', 's62', 's62', 4)
                self.wait_flags(1, 's62', 16)
            last = self.stage64(2, pre[2], post_loop=mk64(3, 0, NE[1]), post_store=mk64(3, NE[1], 13), pre_a=w2)
            idx64()
            self.signal(2, 's79', last)

            def w3():
                a.s('s_lshl_b32', 's62', 's88', 3)
                self.wait_flags(2, 's62', 8)
            last = self.stage64(3, pre[3], post_loop=mk64(4, 0, NE[2]), post_store=mk64(4, NE[2], 13), pre_a=w3)
            idx64()
            self.signal(3, 's79', last)

            def w4():
                a.s('s_lshl_b32', 's62', 's88', 3)
                a.s('s_sub_u32', 's62', 's62', 8)
                a.s('s_cmp_eq_u32', 's88', 0)
                a.s('s_cselect_b32', 's63', 8, 0)
                a.s('s_cmp_eq_u32', 's88', 31)
                a.s('s_cselect_b32', 's93', 16, 24)
                self.wait_flags(3, 's62', 24, 's63', 's93')
            last = self.stage64(4, pre[4], post_loop=mk5(0, NE[3], True), post_store=mk5(NE[3], 15), pre_a=w4)
            idx64()
            self.signal(4, 's79', last)
            mk5(15, 18)()

            def w5():
                a.s('s_lshl_b32', 's62', 's91', 4)
                self.wait_flags(4, 's62', 16)
            last = self.stage5(pre[5], post_loop=mk64(6, 0, NE[4], True), post_store=mk64(6, NE[4], 15), pre_a=w5)
            idx128()
            self.signal(5, 's79', last)
            last = self.stage64(6, pre[6], pre_a=lambda: (a.s('s_lshr_b32', 's62', 's88', 1), a.s('s_lshl_b32', 's62', 's62', 4),
                                                          self.wait_flags(5, 's62', 16)))
        return [(NAME + '_kernel', body)]


HEADER = open('cdna_kernels/' + NAME + '.s.ref').read().split('; Override launch geometry')[0]


def descriptor(label):
    return f""".section .rodata,"a"
.p2align 6
.amdhsa_kernel {label}
  .amdhsa_next_free_vgpr 256
  .amdhsa_next_free_sgpr 96
  .amdhsa_accum_offset 256
  .amdhsa_group_segment_fixed_size 0
  .amdhsa_kernarg_size 88
  .amdhsa_user_sgpr_count 2
  .amdhsa_user_sgpr_kernarg_segment_ptr 1
  .amdhsa_system_sgpr_workgroup_id_x 1
.end_amdhsa_kernel
"""


def main():
    mode = sys.argv[1] if len(sys.argv) > 1 else 'multi'
    out = sys.argv[2] if len(sys.argv) > 2 else 'cdna_kernels/' + NAME + '.s'
    g = Gen(mode != 'multi')
    g.nearly = [int(x) for x in os.environ.get('NEARLY', '5,5,5,5,8').split(',')]
    if mode == 'multi':
        ks = g.build_multi()
        hdr = HEADER + ''.join(f'; @launch kernel={k} grid=(256,1,1) block=(512,1,1) lds={LDS_BYTES}\n' for k, _ in ks)
    else:
        ks = g.build_persistent()
        hdr = HEADER + f'; @launch grid=(256,1,1) block=(512,1,1) lds={LDS_BYTES}\n'
    txt = hdr + '.amdgcn_target "amdgcn-amd-amdhsa--gfx950"\n.text\n'
    for k, body in ks:
        txt += g.kernel_text(k, body)
    for k, _ in ks:
        txt += descriptor(k)
    open(out, 'w').write(txt)
    print('wrote', out, len(txt), 'bytes')


if __name__ == '__main__':
    main()
```
